```python
import torch

def _softmax(x, axis=-1):
    return torch.softmax(x, dim=axis)
def _gelu(x):
    return torch.nn.functional.gelu(x, approximate="tanh")
def _silu(x):
    return torch.nn.functional.silu(x)
def _sigmoid(x):
    return torch.sigmoid(x)
def _layernorm(x, axis=-1, eps=1e-5):
    m = x.mean(dim=axis, keepdim=True)
    v = x.var(dim=axis, keepdim=True, unbiased=False)
    return (x - m) / torch.sqrt(v + eps)
def _scatter_add(tgt, idx, src, axis=0):
    return tgt.clone().index_add_(axis, idx, src)
def _segment_sum(src, seg, n):
    out = torch.zeros((n,) + src.shape[1:], dtype=src.dtype)
    return out.index_add_(0, seg, src)
def _pad(x, pw):
    flat = tuple(v for pair in reversed(pw) for v in pair)
    return torch.nn.functional.pad(x, flat)

kernel_name = 'interleave_layers__linear_kernel_hedgehog__mixer_channel_mlp__prompt'

def setup_inputs():

    _w = (lambda a: (lambda t: t.to(torch.bfloat16) if t.is_floating_point() else t)(torch.as_tensor(a)))
    def _A_setup():
        B, S, D, H = 1, 2048, 640, 32
        Dh = D // H
        return {
            "x": _w((lambda *s: torch.randn(*s, dtype=torch.bfloat16) * 0.05)(B, S, D)),
            "wqkv": _w((lambda *s: torch.randn(*s, dtype=torch.bfloat16) * 0.4)(D, 3 * D)),
            "w_phi": _w((lambda *s: torch.randn(*s, dtype=torch.bfloat16) * 0.4)(H, Dh, Dh) * (Dh ** -0.5)),
            "wo": _w((lambda *s: torch.randn(*s, dtype=torch.bfloat16) * 0.05)(D, D)),
        }
    _A_in = _A_setup()

    def _B_setup():
        B, S, D, F = 1, 2048, 640, 1728
        return {
            "x": _w((lambda *s: torch.randn(*s, dtype=torch.bfloat16) * 0.05)(B, S, D)),
            "w1": _w((lambda *s: torch.randn(*s, dtype=torch.bfloat16) * 3.2)(D, F) * (D ** -0.5)),
            "b1": _w((lambda *s: torch.randn(*s, dtype=torch.bfloat16) * 1.6)(F)),
            "w2": _w((lambda *s: torch.randn(*s, dtype=torch.bfloat16) * 1.6)(F, D) * (F ** -0.5)),
            "b2": _w((lambda *s: torch.randn(*s, dtype=torch.bfloat16) * 1.6)(D)),
        }
    _B_in = _B_setup()

    return {
        "A_x": _A_in["x"],
        "A_wqkv": _A_in["wqkv"],
        "A_w_phi": _A_in["w_phi"],
        "A_wo": _A_in["wo"],
        "B_x": _B_in["x"],
        "B_w1": _B_in["w1"],
        "B_b1": _B_in["b1"],
        "B_w2": _B_in["w2"],
        "B_b2": _B_in["b2"],
    }

def reference(A_x, A_wqkv, A_w_phi, A_wo, B_x, B_w1, B_b1, B_w2, B_b2):
    def _A_ref(x, wqkv, w_phi, wo):
        B, S, D = x.shape
        H = 32; Dh = D // H
        qkv = (lambda x, *d: x.permute(*d))((x @ wqkv).reshape(B, S, 3, H, Dh), 2, 0, 3, 1, 4)
        q, k, v = qkv[0], qkv[1], qkv[2]
        pq = torch.einsum("bhsd,hdf->bhsf", q, w_phi)
        pk = torch.einsum("bhsd,hdf->bhsf", k, w_phi)
        phi_q = torch.concatenate([_softmax(pq, axis=-1), _softmax(-pq, axis=-1)], axis=-1)
        phi_k = torch.concatenate([_softmax(pk, axis=-1), _softmax(-pk, axis=-1)], axis=-1)
        kv = torch.einsum("bhsf,bhsd->bhfd", phi_k, v)
        z  = torch.einsum("bhsf->bhf", phi_k)
        num = torch.einsum("bhqf,bhfd->bhqd", phi_q, kv)
        den = torch.einsum("bhqf,bhf->bhq", phi_q, z)[..., None] + 1e-6
        o = num / den
        return (lambda x, *d: x.permute(*d))(o, 0, 2, 1, 3).reshape(B, S, D) @ wo

    def _B_ref(x, w1, b1, w2, b2):
        y = _layernorm(x, axis=-1)
        h = _gelu(torch.einsum("bsd,df->bsf", y, w1) + b1)
        return torch.einsum("bsf,fd->bsd", h, w2) + b2

    x = A_x
    x = x + _A_ref(_layernorm(x, axis=-1), A_wqkv, A_w_phi, A_wo)
    x = x + _B_ref(_layernorm(x, axis=-1), B_w1, B_b1, B_w2, B_b2)
    x = x + _A_ref(_layernorm(x, axis=-1), A_wqkv, A_w_phi, A_wo)
    x = x + _B_ref(_layernorm(x, axis=-1), B_w1, B_b1, B_w2, B_b2)
    return x
```

```python
import re

TRANS = ("v_exp_f32", "v_log_f32", "v_rcp_f32", "v_rsq_f32", "v_sqrt_f32", "v_sin_f32", "v_cos_f32")
_REG = re.compile(r"^(-?\|?)([vas])(\d+)\|?$")
_REGR = re.compile(r"^(-?\|?)([vas])\[(\d+):(\d+)\]\|?$")

def regs_of(tok):
    tok = tok.strip()
    m = _REG.match(tok)
    if m:
        return [(m.group(2), int(m.group(3)))]
    m = _REGR.match(tok)
    if m:
        return [(m.group(2), i) for i in range(int(m.group(3)), int(m.group(4)) + 1)]
    if tok == "vcc":
        return [("s", 106), ("s", 107)]
    if tok == "vcc_lo": return [("s", 106)]
    if tok == "vcc_hi": return [("s", 107)]
    if tok == "exec":
        return [("s", 126), ("s", 127)]
    if tok == "exec_lo": return [("s", 126)]
    if tok == "exec_hi": return [("s", 127)]
    if tok == "m0":
        return [("s", 124)]
    return []

def split_ops(s):
    out, depth, cur = [], 0, ""
    for ch in s:
        if ch in "[(": depth += 1
        if ch in "])": depth -= 1
        if ch == "," and depth == 0:
            out.append(cur.strip()); cur = ""
        else:
            cur += ch
    if cur.strip(): out.append(cur.strip())
    return out

class Ins:
    __slots__ = ("text", "mn", "kind", "wr", "rd", "srcC", "srcAB", "passes", "trans", "dpp", "lds", "wide_store", "nop", "permlane", "lane_rd", "sdst_valu", "mods")

def parse(text):
    t = text.split(";")[0].split("//")[0].strip()
    I = Ins(); I.text = text
    I.wr = []; I.rd = []; I.srcC = []; I.srcAB = []; I.passes = 0; I.trans = False; I.dpp = False
    I.lds = False; I.wide_store = False; I.nop = 0; I.permlane = False; I.lane_rd = False; I.sdst_valu = []
    sp = t.split(None, 1)
    mn = sp[0]; rest = sp[1] if len(sp) > 1 else ""
    I.mn = mn
    ops = split_ops(rest)
    mods = []
    if ops:
        last = ops[-1].split()
        ops[-1] = last[0]
        mods = last[1:]
    I.mods = mods
    R = [regs_of(o) for o in ops]
    if mn.startswith("v_mfma"):
        I.kind = "mfma"
        I.wr = R[0]; I.srcAB = R[1] + R[2]; I.srcC = R[3]; I.rd = I.srcAB + I.srcC
        I.passes = 4 if ("16x16x32" in mn or "16x16x16" in mn) else 8
    elif mn.startswith("v_"):
        I.kind = "valu"
        base = mn.replace("_e32", "").replace("_e64", "").replace("_dpp", "")
        I.trans = base in TRANS
        I.dpp = any(m.startswith(("row_", "quad_perm", "wave_")) for m in mods)
        if base.startswith("v_cmp"):
            I.wr = R[0]; I.rd = sum(R[1:], [])
            I.sdst_valu = R[0]
        elif base in ("v_readfirstlane_b32", "v_readlane_b32"):
            I.wr = R[0]; I.rd = sum(R[1:], []); I.lane_rd = True; I.sdst_valu = R[0]
        elif base in ("v_add_co_u32", "v_sub_co_u32", "v_addc_co_u32", "v_subb_co_u32"):
            I.wr = R[0] + R[1]; I.rd = sum(R[2:], []); I.sdst_valu = R[1]
        elif base.startswith("v_permlane") and "swap" in base:
            I.wr = R[0] + R[1]; I.rd = R[0] + R[1]; I.permlane = True
        elif base in ("v_fmac_f32", "v_dot2c_f32_bf16", "v_writelane_b32"):
            I.wr = R[0]; I.rd = sum(R, [])
        elif base == "v_cndmask_b32":
            I.wr = R[0]; I.rd = sum(R[1:], [])
            if len(ops) == 3: I.rd += regs_of("vcc")
        else:
            I.wr = R[0]; I.rd = sum(R[1:], [])
    elif mn.startswith(("buffer_", "global_")):
        I.kind = "vmem"
        I.lds = ("lds" in mods) or ("_lds_" in mn)
        if mn in ("buffer_wbl2", "buffer_inv"):
            pass
        elif "atomic" in mn:
            if mn.startswith("buffer_"):
                I.rd = sum(R, [])
                if "sc0" in mods: I.wr = R[0]
            else:
                if "sc0" in mods:
                    I.wr = R[0]; I.rd = sum(R[1:], [])
                else:
                    I.rd = sum(R, [])
        elif "load" in mn:
            if I.lds:
                I.rd = sum(R, []) + regs_of("m0")
            else:
                I.wr = R[0]; I.rd = sum(R[1:], [])
        else:
            I.rd = sum(R, [])
            if "x4" in mn or "x3" in mn:
                I.wide_store = True
                I.srcC = R[0] if mn.startswith("buffer_") else R[1]
    elif mn.startswith("ds_"):
        I.kind = "ds"
        if mn.startswith("ds_read") or mn.startswith("ds_bpermute") or mn.startswith("ds_permute") or mn.startswith("ds_swizzle"):
            I.wr = R[0]; I.rd = sum(R[1:], [])
        else:
            I.rd = sum(R, [])
    elif mn == "s_nop":
        I.kind = "nop"; I.nop = int(ops[0], 0) + 1
    elif mn.startswith("s_"):
        I.kind = "salu"
        if mn.startswith(("s_cmp", "s_cbranch", "s_branch", "s_waitcnt", "s_barrier", "s_endpgm", "s_setprio", "s_sleep", "s_bitcmp")):
            I.rd = sum(R, [])
        else:
            I.wr = R[0] if R else []; I.rd = sum(R[1:], [])
            if "saveexec" in mn: I.wr = I.wr + regs_of("exec")
    else:
        raise ValueError("unknown instruction: " + text)
    return I

class Asm:
    def __init__(self):
        self.lines = []
        self.uid = 0
    def __call__(self, s):
        for l in s.split("\n"):
            self.lines.append(("raw", l))
    def e(self, fmt, *a):
        self.lines.append(("ins", fmt % a if a else fmt))
    def c(self, s):
        self.lines.append(("raw", "  ; " + s))
    def label(self, name):
        self.lines.append(("label", name))
    def newlabel(self, base="L"):
        self.uid += 1
        return f"{base}_{self.uid}"
    def fence(self):
        self.lines.append(("ins", "s_nop 15")); self.lines.append(("ins", "s_nop 3"))

    def text(self, stats=None):
        out = []
        pos = 0
        wr = {}
        srcC = {}
        stdata = {}
        nnop = 0
        for kind, s in self.lines:
            if kind == "raw":
                out.append(s); continue
            if kind == "label":
                out.append(s + ":"); continue
            I = parse(s)
            need = 0
            def req(prod_pos, ws):
                nonlocal need
                have = pos - prod_pos - 1
                if ws - have > need: need = ws - have
            isv = lambda r: r[0] in "va"
            if I.kind in ("mfma", "valu", "vmem", "ds", "salu"):
                for r in I.rd:
                    w = wr.get(r)
                    if not w: continue
                    p, k, info = w
                    if k == "mfma":
                        ps = info["passes"]
                        if I.kind == "mfma":
                            if r in I.srcC and r not in I.srcAB:
                                if I.srcC == info["dst"] and I.passes == ps:
                                    pass
                                else:
                                    req(p, {2: 4, 4: 6, 8: 10}[ps])
                            if r in I.srcAB:
                                req(p, {2: 5, 4: 8, 8: 12}[ps])
                        else:
                            req(p, {2: 5, 4: 8, 8: 12}[ps])
                    elif k == "valu":
                        if isv(r):
                            if I.kind == "mfma": req(p, 2)
                            if I.kind == "valu":
                                if info["trans"] and not I.trans: req(p, 1)
                                if info["trans"] and I.trans: req(p, 1)
                                if I.dpp: req(p, 2)
                                if I.permlane: req(p, 2)
                                if I.lane_rd: req(p, 1)
                        else:
                            if I.kind == "valu": req(p, 4 if I.lane_rd else 2)
                            if I.kind == "vmem": req(p, 5)
                            if I.kind == "salu": req(p, 4)
                            if I.kind == "mfma": req(p, 4)
                    elif k == "salu":
                        if r == ("s", 124) and (I.lds): req(p, 1)
                        if r in (("s", 126), ("s", 127)) : pass
                for r in I.wr:
                    w = wr.get(r)
                    if w and w[1] == "mfma" and I.kind != "mfma":
                        req(w[0], {2: 5, 4: 8, 8: 12}[w[2]["passes"]])
                    if w and w[1] == "mfma" and I.kind == "mfma":
                        if not (I.srcC == w[2]["dst"] and I.wr == w[2]["dst"]):
                            req(w[0], {2: 5, 4: 8, 8: 12}[w[2]["passes"]])
                    if I.kind in ("valu",):
                        c = srcC.get(r)
                        if c: req(c[0], {2: 1, 4: 3, 8: 7}[c[1]])
                    if I.kind in ("valu", "vmem", "ds", "mfma"):
                        sd = stdata.get(r)
                        if sd is not None: req(sd, 2)
                ew = wr.get(("s", 126))
                if ew and (I.kind == "mfma" or (I.kind == "valu" and (I.dpp or I.permlane or I.lane_rd))):
                    req(ew[0], 4 if ew[1] == "valu" else 1)
            while need > 0:
                n = min(need, 16)
                out.append("  s_nop %d" % (n - 1)); pos += n; need -= n; nnop += 1
            out.append("  " + s)
            if I.kind == "nop":
                pos += I.nop; continue
            for r in I.wr:
                if I.kind == "mfma":
                    wr[r] = (pos, "mfma", {"passes": I.passes, "dst": I.wr})
                elif I.kind == "valu":
                    wr[r] = (pos, "valu", {"trans": I.trans})
                elif I.kind == "salu":
                    wr[r] = (pos, "salu", None)
                else:
                    wr[r] = (pos, "mem", None)
            if I.kind == "mfma":
                for r in I.srcC: srcC[r] = (pos, I.passes)
            if I.wide_store:
                for r in I.srcC: stdata[r] = pos
            pos += 1
        if stats is not None:
            stats["nops"] = nnop
        return "\n".join(out) + "\n"

def vr(b, n=1):
    return f"v{b}" if n == 1 else f"v[{b}:{b+n-1}]"
def ar(b, n=1):
    return f"a{b}" if n == 1 else f"a[{b}:{b+n-1}]"
def sr(b, n=1):
    return f"s{b}" if n == 1 else f"s[{b}:{b+n-1}]"

class Pool:
    def __init__(self, start, end, name):
        self.p = start; self.end = end; self.name = name; self.hi = start
    def alloc(self, n=1, align=1):
        if n > 1 and align == 1: align = 2
        b = (self.p + align - 1) // align * align
        self.p = b + n
        self.hi = max(self.hi, self.p)
        assert self.p <= self.end, f"{self.name} pool exhausted ({self.p} > {self.end})"
        return b
    def mark(self): return self.p
    def release(self, m): self.p = m

def kernel_begin(a, name):
    a(f".globl {name}\n.p2align 8\n.type {name},@function\n{name}:")

def kernel_desc(name, vgpr, sgpr=102, accum=None, wg_y=False):
    if accum is None:
        accum = (vgpr + 3) // 4 * 4
    s = f""".p2align 6
.amdhsa_kernel {name}
  .amdhsa_next_free_vgpr {vgpr}
  .amdhsa_next_free_sgpr {sgpr}
  .amdhsa_accum_offset {accum}
  .amdhsa_group_segment_fixed_size 0
  .amdhsa_kernarg_size 96
  .amdhsa_user_sgpr_count 2
  .amdhsa_user_sgpr_kernarg_segment_ptr 1
  .amdhsa_system_sgpr_workgroup_id_x 1
"""
    if wg_y:
        s += "  .amdhsa_system_sgpr_workgroup_id_y 1\n"
    s += """  .amdhsa_float_denorm_mode_32 3
  .amdhsa_float_denorm_mode_16_64 3
.end_amdhsa_kernel
"""
    return s

HEADER = '.amdgcn_target "amdgcn-amd-amdhsa--gfx950"\n.text\n'
```

```python
from asmlib import *
from layout import *

def make_srd(a, dst, ptr, nbytes):
    a.e("s_mov_b32 s%d, s%d", dst, ptr)
    a.e("s_and_b32 s%d, s%d, 0xffff", dst + 1, ptr + 1)
    a.e("s_mov_b32 s%d, 0x%x", dst + 2, nbytes)
    a.e("s_mov_b32 s%d, 0x20000", dst + 3)

def build_selectors(a, vlane_lo4, vqd, sel0, sel1, t0, t1):
    for k, sel in enumerate((sel0, sel1)):
        a.e("v_lshlrev_b32 v%d, 3, v%d", t0, vqd)
        a.e("v_sub_u32 v%d, v%d, v%d", t0, vlane_lo4, t0)
        if k: a.e("v_add_u32 v%d, 16, v%d", t0, t0)
        for dw in range(4):
            a.e("v_mov_b32 v%d, 0", sel + dw)
            a.e("v_mov_b32 v%d, 0x3f80", t1)
            a.e("v_cmp_eq_u32 vcc, %d, v%d", 2 * dw, t0)
            a.e("v_cndmask_b32 v%d, v%d, v%d, vcc", sel + dw, sel + dw, t1)
            a.e("v_mov_b32 v%d, 0x3f800000", t1)
            a.e("v_cmp_eq_u32 vcc, %d, v%d", 2 * dw + 1, t0)
            a.e("v_cndmask_b32 v%d, v%d, v%d, vcc", sel + dw, sel + dw, t1)
```

```python
S, D, H, DH, F = 2048, 640, 32, 20, 1728
XF = [0x0000000, 0x0300000, 0x0600000, 0x0900000]
ST = [0x0C00000, 0x0C20000, 0x0C40000, 0x0C60000]
WQ = 0x0D00000
CSQ = 0x0F80000
WO = 0x1000000
W1 = 0x1100000
CS1 = 0x1340000
CS1_G = 1792 * 4
W2 = 0x1400000
KV = [0x1700000, 0x1720000]
KV_HEAD = 24 * 40 * 4
PHI = 0x1800000
HB = 0x1E00000
STAMP = 0x3000000
WS_REC = 0x4000000
OOB = 0x40000000
TB1 = [cg * 54 + o for cg in range(2) for o in (0, 7, 14, 21, 28, 35, 42, 48)]
NT1 = [7, 7, 7, 7, 7, 7, 6, 6] * 2
KA = dict(A_x=0, wqkv=8, wphi=16, wo=24, B_x=32, w1=40, b1=48, w2=56, b2=64, out=72, dbg=80, ws=88)
```

```python
from common import *

LOG2E = 1.4426950408889634
import struct
def f32bits(x):
    return struct.unpack("<I", struct.pack("<f", x))[0]

class VM:
    def __init__(self): self.n = 0
    def issue(self): self.n += 1; return self.n - 1
    def wait_for(self, a, idx):
        a.e("s_waitcnt vmcnt(%d)", min(self.n - 1 - idx, 63))
    def cnt(self, idx): return min(self.n - 1 - idx, 63)

def wg_decode_128(a, s_rb, s_col, ncol_per_cg=8):
    e = a.e
    e("s_and_b32 s%d, s2, 7", s_rb)
    e("s_lshr_b32 s%d, s2, 3", s_col)
    e("s_and_b32 s3, s%d, 1", s_rb)
    e("s_lshr_b32 s%d, s%d, 1", s_rb, s_rb)
    e("s_lshl_b32 s%d, s%d, 2", s_rb, s_rb)
    e("s_and_b32 s24, s%d, 3", s_col)
    e("s_add_u32 s%d, s%d, s24", s_rb, s_rb)
    e("s_lshr_b32 s%d, s%d, 2", s_col, s_col)
    e("s_lshl_b32 s3, s3, 3")
    e("s_add_u32 s%d, s%d, s3", s_col, s_col)

def stats_finish(a, STR, M, R, T, VAR_EPS_REG=None, double=False):
    e = a.e
    e("v_add_f32 v%d, v%d, v%d", M, STR + 0, STR + 2)
    e("v_add_f32 v%d, v%d, v%d", R, STR + 1, STR + 3)
    for i in range(2, 8):
        e("v_add_f32 v%d, v%d, v%d", M, M, STR + 2 * i)
        e("v_add_f32 v%d, v%d, v%d", R, R, STR + 2 * i + 1)
    e("v_mul_f32 v%d, 0x%x, v%d", M, f32bits(1.0 / 640), M)
    e("v_mul_f32 v%d, 0x%x, v%d", R, f32bits(1.0 / 640), R)
    e("v_fma_f32 v%d, -v%d, v%d, v%d", R, M, M, R)
    e("v_max_f32 v%d, 0, v%d", R, R)
    if not double:
        e("v_add_f32 v%d, 0x%x, v%d", R, f32bits(1e-5), R)
        e("v_rsq_f32 v%d, v%d", R, R)
    else:
        e("v_add_f32 v%d, 0x%x, v%d", T, f32bits(1e-5), R)
        e("v_rcp_f32 v%d, v%d", T + 1, T)
        e("v_rsq_f32 v%d, v%d", T, T)
        e("v_mul_f32 v%d, v%d, v%d", R, R, T + 1)
        e("v_add_f32 v%d, 0x%x, v%d", R, f32bits(1e-5), R)
        e("v_rsq_f32 v%d, v%d", R, R)
        e("v_mul_f32 v%d, v%d, v%d", R, R, T)

def gen_p1(a, layer, name):
    e = a.e
    xin, st, kv = XF[2 * layer], ST[2 * layer], KV[layer]
    kernel_begin(a, name)
    e("s_cmp_ge_u32 s2, 256"); e("s_cbranch_scc1 %s_end", name)
    e("s_load_dwordx2 s[22:23], s[0:1], 88")
    SW, SRB, SJ = 8, 9, 10
    VL16, VL16B, VL16C, VLO, VQD = 1, 2, 3, 4, 5
    e("v_lshrrev_b32 v6, 6, v0")
    e("v_and_b32 v0, 63, v0")
    e("v_readfirstlane_b32 s%d, v6", SW)
    e("v_lshlrev_b32 v%d, 4, v0", VL16)
    e("v_add_u32 v%d, 0x10000, v%d", VL16B, VL16)
    e("v_add_u32 v%d, 0x20000, v%d", VL16C, VL16)
    e("v_and_b32 v%d, 15, v0", VLO)
    e("v_lshrrev_b32 v%d, 4, v0", VQD)
    wg_decode_128(a, SRB, SJ)
    ACC = 8
    CSR = 72
    CSR2 = 104
    STR = 136
    BFR, AFR = 0, 160
    for i in range(64): e("v_mov_b32 v%d, 0", ACC + i)
    SWO, SX0, SX1, SM0 = 12, 13, 14, 15
    e("s_mul_i32 s%d, s%d, 163840", SWO, SJ)
    e("s_lshl_b32 s%d, s%d, 11", SM0, SW)
    e("s_add_u32 s%d, s%d, s%d", SWO, SWO, SM0)
    e("s_add_u32 s%d, s%d, 0x%x", SWO, SWO, WQ)
    STT = 16
    e("s_lshl_b32 s%d, s%d, 3", STT, SRB); e("s_lshl_b32 s3, s%d, 1", SW); e("s_add_u32 s%d, s%d, s3", STT, STT)
    e("s_mul_i32 s%d, s%d, 20480", SX0, STT); e("s_add_u32 s%d, s%d, 0x%x", SX0, SX0, xin)
    e("s_add_u32 s%d, s%d, 20480", SX1, SX0)
    e("s_waitcnt lgkmcnt(0)")
    make_srd(a, 4, 22, WS_REC)
    vm = VM()
    kdone = {}
    def issue_k(k):
        e("s_add_u32 m0, s%d, %d", SM0, k * 8192)
        e("s_add_u32 s17, s%d, %d", SWO, k * 8192)
        e("buffer_load_dwordx4 v%d, s[4:7], s17 offen lds", VL16); vm.issue()
        e("buffer_load_dwordx4 v%d, s[4:7], s17 offen offset:1024 lds", VL16); vm.issue()
        if k % 4 == 0 and k:
            e("s_add_u32 s%d, s%d, 4096", SX0, SX0); e("s_add_u32 s%d, s%d, 4096", SX1, SX1)
        for tt, sx in enumerate((SX0, SX1)):
            b = BFR + (k * 2 + tt) * 4
            e("buffer_load_dwordx4 a[%d:%d], v%d, s[4:7], s%d offen offset:%d", b, b + 3, VL16, sx, (k % 4) * 1024)
            kdone[k] = vm.issue()
    def issue_params():
        e("v_lshlrev_b32 v6, 7, v%d", VQD)
        e("s_lshl_b32 s17, s%d, 9", SJ); e("s_add_u32 s17, s17, 0x%x", CSQ)
        for t in range(8):
            e("buffer_load_dwordx4 v[%d:%d], v6, s[4:7], s17 offen offset:%d", CSR + 4 * t, CSR + 4 * t + 3, t * 16); vm.issue()
        e("s_add_u32 s17, s17, 8192")
        for t in range(8):
            e("buffer_load_dwordx4 v[%d:%d], v6, s[4:7], s17 offen offset:%d", CSR2 + 4 * t, CSR2 + 4 * t + 3, t * 16); vm.issue()
        e("v_lshlrev_b32 v7, 6, v%d", VLO)
        e("s_lshl_b32 s17, s%d, 10", STT); e("s_add_u32 s17, s17, 0x%x", st)
        for tt in range(2):
            for q in range(4):
                e("buffer_load_dwordx4 v[%d:%d], v7, s[4:7], s17 offen offset:%d", STR + 16 * tt + 4 * q, STR + 16 * tt + 4 * q + 3, tt * 1024 + q * 16)
                last = vm.issue()
        return last
    def lds_addr(off):
        base = (VL16, VL16B, VL16C)[off >> 16]
        return base, off & 0xffff
    def read_A(k, t):
        base, off = lds_addr((k * 8 + t) * 1024)
        r = AFR + (k & 1) * 32 + t * 4
        e("ds_read_b128 a[%d:%d], v%d offset:%d", r, r + 3, base, off)
    DP = 8
    for k in range(DP): issue_k(k)
    vm.wait_for(a, kdone[0]); e("s_barrier")
    for t in range(8): read_A(0, t)
    params_last = None
    for k in range(20):
        if k + 1 < 20:
            e("s_waitcnt vmcnt(%d) lgkmcnt(0)", vm.cnt(kdone[k + 1]))
            e("s_barrier")
        else:
            e("s_waitcnt lgkmcnt(0)")
        n = 0
        for t in range(8):
            for tt in range(2):
                c = ACC + tt * 32 + t * 4
                ra = AFR + (k & 1) * 32 + t * 4
                rb = BFR + (k * 2 + tt) * 4
                e("v_mfma_f32_16x16x32_bf16 v[%d:%d], a[%d:%d], a[%d:%d], v[%d:%d]", c, c + 3, ra, ra + 3, rb, rb + 3, c, c + 3)
                n += 1
                if n <= 8 and k + 1 < 20: read_A(k + 1, n - 1)
                if n == 9:
                    if k + DP < 20: issue_k(k + DP)
                    elif params_last is None: params_last = issue_params()
    e("s_barrier")
    vm.wait_for(a, params_last)
    for i in range(32): e("v_add_f32 v%d, v%d, v%d", CSR + i, CSR + i, CSR2 + i)
    EP = 104
    PK = 124
    PK = 168
    VP = 188
    M, R, C, T0, T1, T2, MX, MN = 194, 195, 196, 197, 198, 199, 200, 201
    VPH, VPT, VLK, VLV = 202, 203, 204, 205
    e("v_mul_u32_u24 v%d, 1280, v%d", T0, VQD)
    e("v_lshl_add_u32 v%d, v%d, 4, v%d", VPH, VLO, T0)
    e("v_lshl_add_u32 v%d, v%d, 2, v%d", VPT, VLO, T0)
    e("s_lshl_b32 s17, s%d, 5", SW)
    e("v_add_u32 v%d, s17, v%d", T0, VLO)
    e("v_and_b32 v%d, 1, v%d", T1, VQD)
    e("v_lshl_add_u32 v%d, v%d, 7, v%d", T2, T1, T0)
    e("v_mul_u32_u24 v%d, 160, v%d", VLK, T2)
    e("v_lshrrev_b32 v%d, 1, v%d", T2, VQD)
    e("v_lshl_add_u32 v%d, v%d, 7, v%d", T2, T2, T0)
    e("v_mul_u32_u24 v%d, 160, v%d", VLV, T2)
    e("v_mul_u32_u24 v%d, 24, v%d", T1, T1)
    e("v_add3_u32 v%d, v%d, v%d, 96", VLV, VLV, T1) if False else None
    e("v_add_u32 v%d, v%d, v%d", VLV, VLV, T1)
    e("v_add_u32 v%d, 96, v%d", VLV, VLV)
    SPH = 18
    e("s_lshl_b32 s%d, s%d, 5", SPH, STT); e("s_lshl_b32 s3, s%d, 1", SJ); e("s_add_u32 s%d, s%d, s3", SPH, SPH)
    e("s_mul_i32 s%d, s%d, 1280", SPH, SPH); e("s_add_u32 s%d, s%d, 0x%x", SPH, SPH, PHI)
    for tt in range(2):
        A0 = ACC + tt * 32
        stats_finish(a, STR + 16 * tt, M, R, T0)
        e("v_mul_f32 v%d, 0x%x, v%d", C, f32bits(LOG2E), R)
        for i in range(30):
            e("v_fma_f32 v%d, -v%d, v%d, v%d", A0 + i, M, CSR + i, A0 + i)
        e("v_max3_f32 v%d, v%d, v%d, v%d", MX, A0, A0 + 1, A0 + 2)
        e("v_min3_f32 v%d, v%d, v%d, v%d", MN, A0, A0 + 1, A0 + 2)
        for i in range(3, 19, 2):
            e("v_max3_f32 v%d, v%d, v%d, v%d", MX, MX, A0 + i, A0 + i + 1)
            e("v_min3_f32 v%d, v%d, v%d, v%d", MN, MN, A0 + i, A0 + i + 1)
        e("v_max_f32 v%d, v%d, v%d", MX, MX, A0 + 19)
        e("v_min_f32 v%d, v%d, v%d", MN, MN, A0 + 19)
        e("v_mul_f32 v%d, v%d, v%d", MX, MX, C)
        e("v_mul_f32 v%d, v%d, v%d", MN, MN, C)
        for i in range(20):
            e("v_fma_f32 v%d, v%d, v%d, -v%d", EP + i, A0 + i, C, MX)
            e("v_fma_f32 v%d, -v%d, v%d, v%d", A0 + i, A0 + i, C, MN)
        for i in range(20):
            e("v_exp_f32 v%d, v%d", EP + i, EP + i)
            e("v_exp_f32 v%d, v%d", A0 + i, A0 + i)
        e("v_add_f32 v%d, v%d, v%d", T0, EP, EP + 1)
        e("v_add_f32 v%d, v%d, v%d", T1, A0, A0 + 1)
        for i in range(2, 20):
            e("v_add_f32 v%d, v%d, v%d", T0, T0, EP + i)
            e("v_add_f32 v%d, v%d, v%d", T1, T1, A0 + i)
        e("v_rcp_f32 v%d, v%d", T0, T0)
        e("v_rcp_f32 v%d, v%d", T1, T1)
        for i in range(20):
            e("v_mul_f32 v%d, v%d, v%d", EP + i, EP + i, T0)
            e("v_mul_f32 v%d, v%d, v%d", A0 + i, A0 + i, T1)
        for i in range(10):
            e("v_cvt_pk_bf16_f32 v%d, v%d, v%d", PK + i, EP + 2 * i, EP + 2 * i + 1)
            e("v_cvt_pk_bf16_f32 v%d, v%d, v%d", PK + 10 + i, A0 + 2 * i, A0 + 2 * i + 1)
        for i in range(10):
            e("v_mul_f32 v%d, v%d, v%d", A0 + 20 + i, A0 + 20 + i, R)
        for i in range(5):
            e("v_cvt_pk_bf16_f32 v%d, v%d, v%d", VP + i, A0 + 20 + 2 * i, A0 + 21 + 2 * i)
        e("v_mov_b32 v%d, 0x3f80", VP + 5)
        e("s_mov_b32 exec_lo, -1"); e("s_mov_b32 exec_hi, 0")
        if tt: e("s_add_u32 s%d, s%d, %d", SPH, SPH, 32 * 1280)
        for g in range(4):
            e("buffer_store_dwordx4 v[%d:%d], v%d, s[4:7], s%d offen offset:%d", PK + 4 * g, PK + 4 * g + 3, VPH, SPH, g * 256)
        for g in range(4):
            e("buffer_store_dword v%d, v%d, s[4:7], s%d offen offset:%d", PK + 16 + g, VPT, SPH, 1024 + g * 64)
        e("s_mov_b32 exec_lo, 0"); e("s_mov_b32 exec_hi, -1")
        for g in range(5):
            e("ds_write_b128 v%d, v[%d:%d] offset:%d", VLK, PK + 4 * g, PK + 4 * g + 3, tt * 16 * 160 + g * 16)
        e("s_mov_b64 exec, -1")
        for g in range(3):
            e("ds_write_b64 v%d, v[%d:%d] offset:%d", VLV, VP + 2 * g, VP + 2 * g + 1, tt * 16 * 160 + g * 8)
    e("s_waitcnt lgkmcnt(0)")
    e("s_barrier")
    VTA, VTB, VAT = 194, 195, 196
    e("v_lshrrev_b32 v%d, 2, v%d", T0, VLO)
    e("v_lshl_add_u32 v%d, v%d, 2, v%d", T0, VQD, T0)
    e("s_lshr_b32 s17, s%d, 1", SW); e("s_lshl_b32 s17, s17, 7")
    e("v_add_u32 v%d, s17, v%d", T0, T0)
    e("v_mul_u32_u24 v%d, 160, v%d", VTB, T0)
    e("v_and_b32 v%d, 3, v%d", T1, VLO)
    e("v_lshl_add_u32 v%d, v%d, 3, v%d", VTB, T1, VTB)
    e("s_and_b32 s19, s%d, 1", SW)
    e("s_lshl_b32 s17, s19, 5"); e("s_add_u32 s17, s17, 96")
    e("v_add_u32 v%d, s17, v%d", VTA, VTB)
    TA = 8
    TB = 24
    KC = 72
    for ks in range(4):
        for hf in range(2):
            e("ds_read_b64_tr_b16 v[%d:%d], v%d offset:%d", TA + ks * 4 + hf * 2, TA + ks * 4 + hf * 2 + 1, VTA, (32 * ks + 16 * hf) * 160)
        for b in range(3):
            for hf in range(2):
                r = TB + (ks * 3 + b) * 4 + hf * 2
                e("ds_read_b64_tr_b16 v[%d:%d], v%d offset:%d", r, r + 1, VTB, (32 * ks + 16 * hf) * 160 + 32 * b)
    for i in range(12): e("v_mov_b32 v%d, 0", KC + i)
    for ks in range(4):
        e("s_waitcnt lgkmcnt(%d)", min(15, 8 * (3 - ks)))
        for b in range(3):
            r = TB + (ks * 3 + b) * 4
            e("v_mfma_f32_16x16x32_bf16 v[%d:%d], v[%d:%d], v[%d:%d], v[%d:%d]", KC + 4 * b, KC + 4 * b + 3, TA + 4 * ks, TA + 4 * ks + 3, r, r + 3, KC + 4 * b, KC + 4 * b + 3)
    e("v_mul_u32_u24 v%d, 640, v%d", VAT, VQD)
    e("v_lshl_add_u32 v%d, v%d, 2, v%d", VAT, VLO, VAT)
    e("s_lshl_b32 s17, s%d, 1", SJ); e("s_lshr_b32 s3, s%d, 1", SW); e("s_add_u32 s17, s17, s3")
    e("s_mul_i32 s17, s17, %d", KV_HEAD); e("s_mul_i32 s3, s19, 2560"); e("s_add_u32 s17, s17, s3"); e("s_add_u32 s17, s17, 0x%x", kv)
    e("s_cmp_eq_u32 s19, 1"); e("s_cbranch_scc1 %s_a1", name)
    for aa in range(2):
        if aa == 1:
            a.label(name + "_a1"); a.fence()
        for b in range(3):
            for r in range(4):
                mask = 0
                for l in range(64):
                    qd, lo = l >> 4, l & 15
                    rho = 16 * aa + 4 * qd + r
                    c = 16 * b + lo
                    if rho < 24 and rho not in (11, 22, 23) and c < 40: mask |= 1 << l
                if mask == 0: continue
                e("s_mov_b32 exec_lo, 0x%x", mask & 0xffffffff); e("s_mov_b32 exec_hi, 0x%x", mask >> 32)
                e("buffer_atomic_add_f32 v%d, v%d, s[4:7], s17 offen offset:%d", KC + 4 * b + r, VAT, r * 160 + b * 64)
        e("s_endpgm")
    a.label(name + "_end")
    e("s_endpgm")
    return dict(name=name, grid=256, block=256, lds=163840, vgpr=256 + 224, accum=256)
```

```python
from common import *
from p1 import VM, f32bits

VL16, VLO, VQD, VL16B = 1, 2, 3, 4
TA, TB_, TC = 5, 6, 7
RES, BI = 8, 18
SW, STB, SCB = 8, 9, 10
SOFF = 30

def prologue_64x80(a, name, need_out, need_bias):
    e = a.e
    kernel_begin(a, name)
    e("s_cmp_ge_u32 s2, 256"); e("s_cbranch_scc1 %s_end", name)
    e("s_load_dwordx2 s[22:23], s[0:1], 88")
    if need_bias: e("s_load_dwordx2 s[26:27], s[0:1], 64")
    if need_out: e("s_load_dwordx2 s[28:29], s[0:1], 72")
    e("v_lshrrev_b32 v6, 6, v0")
    e("v_and_b32 v0, 63, v0")
    e("v_readfirstlane_b32 s%d, v6", SW)
    e("v_lshlrev_b32 v%d, 4, v0", VL16)
    e("v_add_u32 v%d, 0x10000, v%d", VL16B, VL16)
    e("v_and_b32 v%d, 15, v0", VLO)
    e("v_lshrrev_b32 v%d, 4, v0", VQD)
    e("s_and_b32 s%d, s2, 7", STB)
    e("s_lshr_b32 s%d, s2, 3", SCB)
    e("s_and_b32 s3, s%d, 1", STB)
    e("s_lshr_b32 s%d, s%d, 1", STB, STB)
    e("s_lshl_b32 s%d, s%d, 3", STB, STB)
    e("s_and_b32 s24, s%d, 7", SCB)
    e("s_add_u32 s%d, s%d, s24", STB, STB)
    e("s_lshr_b32 s%d, s%d, 3", SCB, SCB)
    e("s_lshl_b32 s3, s3, 2")
    e("s_add_u32 s%d, s%d, s3", SCB, SCB)
    e("s_lshl_b32 s24, s%d, 2", STB); e("s_add_u32 s24, s24, s%d", SW)
    e("s_mul_i32 s25, s24, 20480")
    e("s_mul_i32 s3, s%d, 5", SCB)
    for T in range(5):
        e("s_add_u32 s17, s3, %d", T)
        e("s_lshr_b32 s18, s17, 1"); e("s_lshl_b32 s18, s18, 10")
        e("s_and_b32 s17, s17, 1"); e("s_lshl_b32 s17, s17, 3")
        e("s_add_u32 s18, s18, s17"); e("s_add_u32 s%d, s18, s25", SOFF + T)
    e("s_waitcnt lgkmcnt(0)")
    make_srd(a, 4, 22, WS_REC)
    if need_bias: make_srd(a, 36, 26, D * 2)
    if need_out: make_srd(a, 40, 28, S * D * 2)

def issue_resid(a, vm, xres, bias):
    e = a.e
    for T in range(5):
        e("s_add_u32 s17, s%d, 0x%x", SOFF + T, xres)
        e("buffer_load_dwordx2 v[%d:%d], v%d, s[4:7], s17 offen", RES + 2 * T, RES + 2 * T + 1, VL16); vm.issue()
    if bias:
        e("v_lshlrev_b32 v%d, 3, v%d", TA, VQD)
        e("s_mul_i32 s17, s%d, 160", SCB)
        for T in range(5):
            e("buffer_load_dwordx2 v[%d:%d], v%d, s[36:39], s17 offen offset:%d", BI + 2 * T, BI + 2 * T + 1, TA, T * 32); vm.issue()

def reduce_and_finish(a, name, ACCA, xout, stout, bias, final):
    e = a.e
    FS = 28
    RD = 48
    OUTP = 108
    S1, S2, T1, T2 = 118, 119, 120, 121
    e("s_mul_i32 s17, s%d, 5120", SW)
    e("v_add_u32 v%d, s17, v%d", TA, VL16)
    e("v_add_u32 v%d, 0x10000, v%d", TB_, TA)
    def lds(off):
        return (VL16, off) if off < 65536 else (VL16B, off - 65536)
    for w in range(4):
        if w < 3:
            e("s_cmp_lg_u32 s%d, %d", SW, w); e("s_cbranch_scc1 %s_rw%d", name, w + 1)
        for tt in range(4):
            if tt == w: continue
            for T in range(5):
                r = ACCA + (tt * 5 + T) * 4
                off = (tt * 20 + T) * 1024
                e("ds_write_b128 v%d, a[%d:%d] offset:%d", TA if off < 65536 else TB_, r, r + 3, off & 0xffff)
        for T in range(5):
            for q in range(4):
                e("v_accvgpr_read_b32 v%d, a%d", FS + T * 4 + q, ACCA + (w * 5 + T) * 4 + q)
        e("s_waitcnt lgkmcnt(0)")
        e("s_barrier")
        n = 0
        for s in range(4):
            if s == w: continue
            for T in range(5):
                b, off = lds(((w * 4 + s) * 5 + T) * 1024)
                e("ds_read_b128 v[%d:%d], v%d offset:%d", RD + n * 4, RD + n * 4 + 3, b, off)
                n += 1
        if w < 3:
            e("s_branch %s_rdone", name)
            a.label("%s_rw%d" % (name, w + 1)); a.fence()
    a.label("%s_rdone" % name)
    for s in range(3):
        e("s_waitcnt lgkmcnt(%d)", 5 * (2 - s))
        for i in range(20):
            e("v_add_f32 v%d, v%d, v%d", FS + i, FS + i, RD + s * 20 + i)
    e("s_waitcnt vmcnt(0)")
    for T in range(5):
        for h in range(2):
            for src in ([RES] + ([BI] if bias else [])):
                e("v_lshlrev_b32 v%d, 16, v%d", T1, src + 2 * T + h)
                e("v_and_b32 v%d, 0xffff0000, v%d", T2, src + 2 * T + h)
                e("v_add_f32 v%d, v%d, v%d", FS + T * 4 + 2 * h, FS + T * 4 + 2 * h, T1)
                e("v_add_f32 v%d, v%d, v%d", FS + T * 4 + 2 * h + 1, FS + T * 4 + 2 * h + 1, T2)
    for T in range(5):
        for h in range(2):
            e("v_cvt_pk_bf16_f32 v%d, v%d, v%d", OUTP + 2 * T + h, FS + T * 4 + 2 * h, FS + T * 4 + 2 * h + 1)
    if final:
        e("v_mul_u32_u24 v%d, 1280, v%d", TA, VLO)
        e("v_lshl_add_u32 v%d, v%d, 3, v%d", TA, VQD, TA)
        e("s_mul_i32 s17, s24, %d", 16 * 1280); e("s_mul_i32 s18, s%d, 160", SCB); e("s_add_u32 s17, s17, s18")
        for T in range(5):
            e("buffer_store_dwordx2 v[%d:%d], v%d, s[40:43], s17 offen offset:%d", OUTP + 2 * T, OUTP + 2 * T + 1, TA, T * 32)
    else:
        for T in range(5):
            e("s_add_u32 s17, s%d, 0x%x", SOFF + T, xout)
            e("buffer_store_dwordx2 v[%d:%d], v%d, s[4:7], s17 offen", OUTP + 2 * T, OUTP + 2 * T + 1, VL16)
        e("v_add_f32 v%d, v%d, v%d", S1, FS, FS + 1)
        e("v_mul_f32 v%d, v%d, v%d", S2, FS, FS)
        e("v_fmac_f32 v%d, v%d, v%d", S2, FS + 1, FS + 1)
        for i in range(2, 20):
            e("v_add_f32 v%d, v%d, v%d", S1, S1, FS + i)
            e("v_fmac_f32 v%d, v%d, v%d", S2, FS + i, FS + i)
        for T in (S1, S2):
            e("v_mov_b32 v%d, v%d", T1, T)
            e("v_permlane32_swap_b32 v%d, v%d", T, T1)
            e("v_add_f32 v%d, v%d, v%d", T, T, T1)
            e("v_mov_b32 v%d, v%d", T1, T)
            e("v_permlane16_swap_b32 v%d, v%d", T, T1)
            e("v_add_f32 v%d, v%d, v%d", T, T, T1)
        e("v_lshlrev_b32 v%d, 6, v%d", TA, VLO)
        e("s_lshl_b32 s17, s24, 10"); e("s_lshl_b32 s18, s%d, 3", SCB); e("s_add_u32 s17, s17, s18"); e("s_add_u32 s17, s17, 0x%x", stout)
        e("s_mov_b32 exec_lo, 0xffff"); e("s_mov_b32 exec_hi, 0")
        e("buffer_store_dwordx2 v[%d:%d], v%d, s[4:7], s17 offen", S1, S2, TA)
    a.label(name + "_end")
    e("s_endpgm")

def gen_p2(a, layer, name):
    e = a.e
    xres, xout, stout, kv = XF[2 * layer], XF[2 * layer + 1], ST[2 * layer + 1], KV[layer]
    prologue_64x80(a, name, False, False)
    vm = VM()
    ACCA, PHR, WOR = 0, 80, 152
    OB = 28
    KS = 108
    KA_ = 168
    CC = 184
    CARRY = 216
    VK0, VK1, VK0T, VK1T, VL4 = 220, 221, 222, 223, 224
    T0, T1, T2 = 225, 226, 227
    OV = 228
    for i in range(80): e("v_accvgpr_write_b32 a%d, 0", ACCA + i)
    for sl in range(3):
        for tt in range(4): e("v_accvgpr_write_b32 a%d, 0", PHR + sl * 24 + tt * 6 + 5)
    for aa in range(2):
        for q in (0, 1, 3): e("v_mov_b32 v%d, 0", KA_ + aa * 8 + 4 + q)
    e("v_lshrrev_b32 v%d, 2, v%d", T0, VLO); e("v_and_b32 v%d, 3, v%d", T1, VLO)
    e("v_mul_u32_u24 v%d, 5, v%d", T0, T0)
    e("v_add_u32 v%d, v%d, v%d", T2, T0, T1)
    e("v_cmp_le_u32 vcc, 10, v%d", T2)
    e("v_cndmask_b32 v%d, 0, 2, vcc", VK0)
    e("v_add_u32 v%d, v%d, v%d", VK0, VK0, T2)
    e("v_add_u32 v%d, 4, v%d", T2, T0)
    e("v_cmp_le_u32 vcc, 10, v%d", T2)
    e("v_cndmask_b32 v%d, 0, 2, vcc", VK1)
    e("v_add_u32 v%d, v%d, v%d", VK1, VK1, T2)
    e("v_cmp_eq_u32 vcc, 0, v%d", T1)
    e("v_mov_b32 v%d, 10", T2)
    e("v_cndmask_b32 v%d, v%d, v%d, vcc", VK1, T2, VK1)
    for VK, VKT in ((VK0, VK0T), (VK1, VK1T)):
        e("v_mul_u32_u24 v%d, 160, v%d", VK, VK)
        e("v_lshl_add_u32 v%d, v%d, 3, v%d", VKT, VQD, VK)
        e("v_lshl_add_u32 v%d, v%d, 5, v%d", VK, VQD, VK)
    e("v_lshlrev_b32 v%d, 2, v0", VL4)
    SKV, SPH, SWO = 12, 13, 14
    e("s_lshl_b32 s17, s%d, 3", SW); e("s_mul_i32 s%d, s17, %d", SKV, KV_HEAD); e("s_add_u32 s%d, s%d, 0x%x", SKV, SKV, kv)
    e("s_lshl_b32 s%d, s%d, 7", SPH, STB); e("s_add_u32 s%d, s%d, s17", SPH, SPH); e("s_mul_i32 s%d, s%d, 1280", SPH, SPH)
    e("s_add_u32 s%d, s%d, 0x%x", SPH, SPH, PHI)
    e("s_mul_i32 s%d, s%d, 20", SWO, SCB); e("s_mul_i32 s17, s%d, 5", SW); e("s_add_u32 s%d, s%d, s17", SWO, SWO)
    e("s_mul_i32 s%d, s%d, 5120", SWO, SWO); e("s_add_u32 s%d, s%d, 0x%x", SWO, SWO, WO)
    hdone, wdone = {}, {}
    def issue_H(h):
        sl = h % 3
        e("s_add_u32 s17, s%d, %d", SKV, h * KV_HEAD)
        for aa, (VK, VKT) in enumerate(((VK0, VK0T), (VK1, VK1T))):
            b = KS + sl * 20 + aa * 10
            e("buffer_load_dwordx4 v[%d:%d], v%d, s[4:7], s17 offen", b, b + 3, VK); vm.issue()
            e("buffer_load_dwordx4 v[%d:%d], v%d, s[4:7], s17 offen offset:16", b + 4, b + 7, VK); vm.issue()
            e("buffer_load_dwordx2 v[%d:%d], v%d, s[4:7], s17 offen offset:128", b + 8, b + 9, VKT); vm.issue()
        for tt in range(4):
            e("s_add_u32 s17, s%d, %d", SPH, (tt * 32 + h) * 1280)
            b = PHR + sl * 24 + tt * 6
            e("buffer_load_dwordx4 a[%d:%d], v%d, s[4:7], s17 offen", b, b + 3, VL16); vm.issue()
            e("buffer_load_dword a%d, v%d, s[4:7], s17 offen offset:1024", b + 4, VL4); hdone[h] = vm.issue()
    def issue_W(s):
        e("s_add_u32 s17, s%d, %d", SWO, s * 5120)
        for T in range(5):
            b = WOR + (s * 5 + T) * 4
            if T == 4: e("s_add_u32 s17, s17, 4096")
            e("buffer_load_dwordx4 a[%d:%d], v%d, s[4:7], s17 offen offset:%d", b, b + 3, VL16, (T % 4) * 1024); wdone[s] = vm.issue()
    def compute_H(h):
        sl = h % 3
        vm.wait_for(a, hdone[h])
        for aa in range(2):
            b = KS + sl * 20 + aa * 10
            for q in range(4):
                e("v_cvt_pk_bf16_f32 v%d, v%d, v%d", KA_ + aa * 8 + q, b + 2 * q, b + 2 * q + 1)
            e("v_cvt_pk_bf16_f32 v%d, v%d, v%d", KA_ + aa * 8 + 4 + 2, b + 8, b + 9)
        for tt in range(4):
            b = PHR + sl * 24 + tt * 6
            for aa in range(2):
                c = CC + (tt * 2 + aa) * 4
                e("v_mfma_f32_16x16x32_bf16 v[%d:%d], v[%d:%d], a[%d:%d], 0", c, c + 3, KA_ + aa * 8, KA_ + aa * 8 + 3, b, b + 3)
        for tt in range(4):
            b = PHR + sl * 24 + tt * 6
            for aa in range(2):
                c = CC + (tt * 2 + aa) * 4
                e("v_mfma_f32_16x16x32_bf16 v[%d:%d], v[%d:%d], a[%d:%d], v[%d:%d]", c, c + 3, KA_ + aa * 8 + 4, KA_ + aa * 8 + 7, b + 2, b + 5, c, c + 3)
        for tt in range(4):
            c0, c1 = CC + tt * 8, CC + tt * 8 + 4
            e("v_add_f32 v%d, 0x%x, v%d", T0, f32bits(1e-6), c1 + 1)
            e("v_rcp_f32 v%d, v%d", T0, T0)
            vals = [c0, c0 + 1, c0 + 2, c0 + 3, c1]
            for i in range(5):
                e("v_mul_f32 v%d, v%d, v%d", OV + i, vals[i], T0)
            def dst(idx):
                s, el = idx >> 3, idx & 7
                return OB + (s * 4 + tt) * 4 + (el >> 1)
            if h % 2 == 0:
                e("v_cvt_pk_bf16_f32 v%d, v%d, v%d", dst(5 * h), OV, OV + 1)
                e("v_cvt_pk_bf16_f32 v%d, v%d, v%d", dst(5 * h + 2), OV + 2, OV + 3)
                e("v_mov_b32 v%d, v%d", CARRY + tt, OV + 4)
            else:
                e("v_cvt_pk_bf16_f32 v%d, v%d, v%d", dst(5 * h - 1), CARRY + tt, OV)
                e("v_cvt_pk_bf16_f32 v%d, v%d, v%d", dst(5 * h + 1), OV + 1, OV + 2)
                e("v_cvt_pk_bf16_f32 v%d, v%d, v%d", dst(5 * h + 3), OV + 3, OV + 4)
    def main_s(s):
        vm.wait_for(a, wdone[s])
        for T in range(5):
            for tt in range(4):
                c = ACCA + (tt * 5 + T) * 4
                w = WOR + (s * 5 + T) * 4
                o = OB + (s * 4 + tt) * 4
                e("v_mfma_f32_16x16x32_bf16 a[%d:%d], a[%d:%d], v[%d:%d], a[%d:%d]", c, c + 3, w, w + 3, o, o + 3, c, c + 3)
    issue_H(0); issue_H(1); issue_H(2); issue_W(0)
    compute_H(0); issue_H(3)
    compute_H(1); issue_W(1); issue_H(4); main_s(0)
    compute_H(2); issue_H(5)
    compute_H(3); issue_W(2); issue_H(6); main_s(1)
    compute_H(4); issue_H(7); main_s(2)
    compute_H(5); issue_W(3); issue_W(4); issue_resid(a, vm, xres, False)
    compute_H(6); main_s(3)
    compute_H(7); main_s(4)
    reduce_and_finish(a, name, ACCA, xout, stout, False, False)
    return dict(name=name, grid=256, block=256, lds=81920, vgpr=256 + 252, accum=256)

def gen_p4(a, layer, name):
    e = a.e
    xres = XF[2 * layer + 1]
    final = layer == 1
    xout, stout = (None, None) if final else (XF[2 * layer + 2], ST[2 * layer + 2])
    prologue_64x80(a, name, final, True)
    vm = VM()
    ACCA = 0
    RING = 80
    NSL_A = 4
    VRING = 28
    NSL_V = 2
    NSL = NSL_A + NSL_V
    def slot(i):
        sl = i % NSL
        return ("a", RING + sl * 36) if sl < NSL_A else ("v", VRING + (sl - NSL_A) * 36)
    for i in range(80): e("v_accvgpr_write_b32 a%d, 0", ACCA + i)
    SW2, SH = 12, 13
    e("s_mul_i32 s%d, s%d, 286720", SW2, SCB); e("s_mul_i32 s17, s%d, 5120", SW); e("s_add_u32 s%d, s%d, s17", SW2, SW2)
    e("s_add_u32 s%d, s%d, 0x%x", SW2, SW2, W2)
    e("s_mul_i32 s%d, s%d, %d", SH, STB, 4 * 54 * 1024); e("s_lshl_b32 s17, s%d, 10", SW); e("s_add_u32 s%d, s%d, s17", SH, SH)
    e("s_add_u32 s%d, s%d, 0x%x", SH, SH, HB)
    SHL = 14
    e("s_cmp_lt_u32 s%d, 2", SW); e("s_cselect_b32 s%d, 0, 4096", SHL)
    done = {}
    NI = 14
    def issue(i):
        cls, b = slot(i)
        e("s_add_u32 s17, s%d, %d", SW2, i * 4 * 5120)
        for T in range(5):
            if T == 4: e("s_add_u32 s17, s17, 4096")
            e("buffer_load_dwordx4 %s[%d:%d], v%d, s[4:7], s17 offen offset:%d", cls, b + T * 4, b + T * 4 + 3, VL16, (T % 4) * 1024); vm.issue()
        for tt in range(4):
            e("s_add_u32 s17, s%d, %d", SH, (tt * 54 + 4 * i) * 1024)
            if i == NI - 1: e("s_sub_u32 s17, s17, s%d", SHL)
            e("buffer_load_dwordx4 %s[%d:%d], v%d, s[4:7], s17 offen", cls, b + 20 + tt * 4, b + 20 + tt * 4 + 3, VL16); done[i] = vm.issue()
    for i in range(NSL): issue(i)
    for i in range(NI):
        cls, b = slot(i)
        vm.wait_for(a, done[i])
        for T in range(5):
            for tt in range(4):
                c = ACCA + (tt * 5 + T) * 4
                e("v_mfma_f32_16x16x32_bf16 a[%d:%d], %s[%d:%d], %s[%d:%d], a[%d:%d]", c, c + 3, cls, b + T * 4, b + T * 4 + 3, cls, b + 20 + tt * 4, b + 20 + tt * 4 + 3, c, c + 3)
        if i + NSL < NI: issue(i + NSL)
        elif i + NSL == NI: issue_resid(a, vm, xres, True)
    reduce_and_finish(a, name, ACCA, xout, stout, True, final)
    return dict(name=name, grid=256, block=256, lds=81920, vgpr=256 + 224, accum=256)
```

```python
from common import *
from p1 import VM, f32bits, wg_decode_128, stats_finish, LOG2E

def gen_p3(a, layer, name):
    e = a.e
    xin, st = XF[2 * layer + 1], ST[2 * layer + 1]
    kernel_begin(a, name)
    e("s_cmp_ge_u32 s2, 256"); e("s_cbranch_scc1 %s_end", name)
    e("s_load_dwordx2 s[22:23], s[0:1], 88")
    e("s_load_dwordx2 s[26:27], s[0:1], 48")
    SW, SRB, SCB = 8, 9, 10
    VL16, VL16B, VL16C, VLO, VQD = 1, 2, 3, 4, 5
    e("v_lshrrev_b32 v6, 6, v0")
    e("v_and_b32 v0, 63, v0")
    e("v_readfirstlane_b32 s%d, v6", SW)
    e("v_lshlrev_b32 v%d, 4, v0", VL16)
    e("v_add_u32 v%d, 0x10000, v%d", VL16B, VL16)
    e("v_add_u32 v%d, 0x20000, v%d", VL16C, VL16)
    e("v_and_b32 v%d, 15, v0", VLO)
    e("v_lshrrev_b32 v%d, 4, v0", VQD)
    wg_decode_128(a, SRB, SCB)
    ACC = 8
    CSR, CSR2 = 64, 92
    STR = 120
    BIR = 152
    BFR, AFR = 0, 160
    for i in range(56): e("v_mov_b32 v%d, 0", ACC + i)
    SWO, SX0, SX1, SM0, STT, STBASE = 12, 13, 14, 15, 16, 19
    e("s_mul_i32 s%d, s%d, 143360", SWO, SCB)
    e("s_lshl_b32 s%d, s%d, 10", SM0, SW)
    e("s_add_u32 s%d, s%d, s%d", SWO, SWO, SM0)
    e("s_add_u32 s%d, s%d, 0x%x", SWO, SWO, W1)
    e("s_lshl_b32 s%d, s%d, 3", STT, SRB); e("s_lshl_b32 s3, s%d, 1", SW); e("s_add_u32 s%d, s%d, s3", STT, STT)
    e("s_mul_i32 s%d, s%d, 20480", SX0, STT); e("s_add_u32 s%d, s%d, 0x%x", SX0, SX0, xin)
    e("s_add_u32 s%d, s%d, 20480", SX1, SX0)
    e("s_and_b32 s17, s%d, 7", SCB); e("s_mul_i32 s%d, s17, 7", STBASE)
    e("s_cmp_eq_u32 s17, 7"); e("s_cselect_b32 s%d, 48, s%d", STBASE, STBASE)
    e("s_lshr_b32 s3, s%d, 3", SCB); e("s_mul_i32 s3, s3, 54"); e("s_add_u32 s%d, s%d, s3", STBASE, STBASE)
    e("s_waitcnt lgkmcnt(0)")
    make_srd(a, 4, 22, WS_REC)
    make_srd(a, 36, 26, F * 2)
    vm = VM()
    ndma = [0]
    kdone = {}
    def issue_k(k):
        need = (7 * (k + 1) + 3) // 4
        last = None
        while ndma[0] < need:
            i = ndma[0]
            e("s_add_u32 m0, s%d, %d", SM0, i * 4096)
            e("s_add_u32 s17, s%d, %d", SWO, i * 4096)
            e("buffer_load_dwordx4 v%d, s[4:7], s17 offen lds", VL16); vm.issue()
            ndma[0] += 1
        if k % 4 == 0 and k:
            e("s_add_u32 s%d, s%d, 4096", SX0, SX0); e("s_add_u32 s%d, s%d, 4096", SX1, SX1)
        for tt, sx in enumerate((SX0, SX1)):
            b = BFR + (k * 2 + tt) * 4
            e("buffer_load_dwordx4 a[%d:%d], v%d, s[4:7], s%d offen offset:%d", b, b + 3, VL16, sx, (k % 4) * 1024)
            kdone[k] = vm.issue()
    def issue_params():
        e("v_lshlrev_b32 v6, 4, v%d", VQD)
        e("s_lshl_b32 s17, s%d, 6", STBASE); e("s_add_u32 s17, s17, 0x%x", CS1)
        for t in range(7):
            e("buffer_load_dwordx4 v[%d:%d], v6, s[4:7], s17 offen offset:%d", CSR + 4 * t, CSR + 4 * t + 3, t * 64); vm.issue()
        e("s_add_u32 s17, s17, %d", CS1_G)
        for t in range(7):
            e("buffer_load_dwordx4 v[%d:%d], v6, s[4:7], s17 offen offset:%d", CSR2 + 4 * t, CSR2 + 4 * t + 3, t * 64); vm.issue()
        e("v_lshlrev_b32 v7, 6, v%d", VLO)
        e("s_lshl_b32 s17, s%d, 10", STT); e("s_add_u32 s17, s17, 0x%x", st)
        for tt in range(2):
            for q in range(4):
                e("buffer_load_dwordx4 v[%d:%d], v7, s[4:7], s17 offen offset:%d", STR + 16 * tt + 4 * q, STR + 16 * tt + 4 * q + 3, tt * 1024 + q * 16); vm.issue()
        e("v_lshlrev_b32 v6, 3, v%d", VQD)
        e("s_lshl_b32 s17, s%d, 5", STBASE)
        for t in range(7):
            e("buffer_load_dwordx2 v[%d:%d], v6, s[36:39], s17 offen offset:%d", BIR + 2 * t, BIR + 2 * t + 1, t * 32); last = vm.issue()
        return last
    def lds_addr(off):
        return (VL16, VL16B, VL16C)[off >> 16], off & 0xffff
    def read_A(k, t):
        base, off = lds_addr((k * 7 + t) * 1024)
        r = AFR + (k & 1) * 28 + t * 4
        e("ds_read_b128 a[%d:%d], v%d offset:%d", r, r + 3, base, off)
    DP = 8
    for k in range(DP): issue_k(k)
    vm.wait_for(a, kdone[0]); e("s_barrier")
    for t in range(7): read_A(0, t)
    params_last = None
    for k in range(20):
        if k + 1 < 20:
            e("s_waitcnt vmcnt(%d) lgkmcnt(0)", vm.cnt(kdone[k + 1]))
            e("s_barrier")
        else:
            e("s_waitcnt lgkmcnt(0)")
        n = 0
        for t in range(7):
            for tt in range(2):
                c = ACC + tt * 28 + t * 4
                ra = AFR + (k & 1) * 28 + t * 4
                rb = BFR + (k * 2 + tt) * 4
                e("v_mfma_f32_16x16x32_bf16 v[%d:%d], a[%d:%d], a[%d:%d], v[%d:%d]", c, c + 3, ra, ra + 3, rb, rb + 3, c, c + 3)
                n += 1
                if n <= 7 and k + 1 < 20: read_A(k + 1, n - 1)
                if n == 8:
                    if k + DP < 20: issue_k(k + DP)
                    elif params_last is None: params_last = issue_params()
    vm.wait_for(a, params_last)
    for i in range(28): e("v_add_f32 v%d, v%d, v%d", CSR + i, CSR + i, CSR2 + i)
    BF = 92
    for t in range(7):
        for h in range(2):
            e("v_lshlrev_b32 v%d, 16, v%d", BF + 4 * t + 2 * h, BIR + 2 * t + h)
            e("v_and_b32 v%d, 0xffff0000, v%d", BF + 4 * t + 2 * h + 1, BIR + 2 * t + h)
    M, R, T0, T1, X, U = 168, 169, 170, 171, 172, 176
    PKD = 180
    K0 = -2.0 * LOG2E * 0.7978845608028654
    K1 = K0 * 0.044715
    e("s_mov_b32 s20, 0x%x", f32bits(K1)); e("v_mov_b32 v%d, 0x%x", 178, f32bits(K0))
    SH = 21
    for tt in range(2):
        A0 = ACC + tt * 28
        stats_finish(a, STR + 16 * tt, M, R, T0, double=True)
        for i in range(28):
            x = A0 + i
            e("v_fma_f32 v%d, -v%d, v%d, v%d", x, M, CSR + i, x)
            e("v_fma_f32 v%d, v%d, v%d, v%d", x, x, R, BF + i)
        for i0 in range(0, 28, 4):
            for q in range(4):
                x = A0 + i0 + q
                e("v_mul_f32 v%d, v%d, v%d", X + q, x, x)
            for q in range(4):
                e("v_fma_f32 v%d, v%d, s20, v%d", X + q, X + q, 178)
            for q in range(4):
                e("v_mul_f32 v%d, v%d, v%d", X + q, X + q, A0 + i0 + q)
            for q in range(4):
                e("v_exp_f32 v%d, v%d", X + q, X + q)
            for q in range(4):
                e("v_add_f32 v%d, 1.0, v%d", X + q, X + q)
            for q in range(4):
                e("v_rcp_f32 v%d, v%d", X + q, X + q)
            for q in range(4):
                e("v_mul_f32 v%d, v%d, v%d", X + q, X + q, A0 + i0 + q)
            t = i0 // 4
            e("v_cvt_pk_bf16_f32 v%d, v%d, v%d", PKD + 2 * t, X, X + 1)
            e("v_cvt_pk_bf16_f32 v%d, v%d, v%d", PKD + 2 * t + 1, X + 2, X + 3)
        e("s_add_u32 s%d, s%d, %d", SH, STT, tt); e("s_mul_i32 s%d, s%d, %d", SH, SH, 54 * 1024); e("s_add_u32 s%d, s%d, 0x%x", SH, SH, HB)
        for t in range(7):
            e("s_add_u32 s17, s%d, %d", STBASE, t)
            e("s_lshr_b32 s18, s17, 1"); e("s_lshl_b32 s18, s18, 10")
            e("s_and_b32 s17, s17, 1"); e("s_lshl_b32 s17, s17, 3")
            e("s_add_u32 s18, s18, s17"); e("s_add_u32 s18, s18, s%d", SH)
            if t == 6:
                e("s_and_b32 s17, s%d, 7", SCB); e("s_cmp_ge_u32 s17, 6")
                lab = a.newlabel(name + "_sk"); e("s_cbranch_scc1 %s", lab)
            e("buffer_store_dwordx2 v[%d:%d], v%d, s[4:7], s18 offen", PKD + 2 * t, PKD + 2 * t + 1, VL16)
            if t == 6: a.label(lab)
        if tt == 0: a.fence()
    a.label(name + "_end")
    e("s_endpgm")
    return dict(name=name, grid=256, block=256, lds=143360, vgpr=256 + 216, accum=256)
```

```python
from common import *

PREP_TASKS = 648

def gen_prep(a, name="prep_kernel"):
    kernel_begin(a, name)
    e = a.e
    e("s_cmp_ge_u32 s2, %d", PREP_TASKS); e("s_cbranch_scc1 %s_end", name)
    e("s_load_dwordx4 s[8:11], s[0:1], 0")
    e("s_load_dwordx4 s[12:15], s[0:1], 16")
    e("s_load_dwordx2 s[16:17], s[0:1], 40")
    e("s_load_dwordx2 s[20:21], s[0:1], 56")
    e("s_load_dwordx2 s[22:23], s[0:1], 88")
    VLO, VQD, VL16 = 1, 2, 3
    e("v_and_b32 v%d, 15, v0", VLO)
    e("v_lshrrev_b32 v%d, 4, v0", VQD)
    e("v_lshlrev_b32 v%d, 4, v0", VL16)
    ONES = 4
    for i in range(4): e("v_mov_b32 v%d, 0x3f803f80", ONES + i)
    SEL0, SEL1 = 8, 12
    build_selectors(a, VLO, VQD, SEL0, SEL1, 16, 17)
    e("s_waitcnt lgkmcnt(0)")
    make_srd(a, 4, 22, WS_REC)
    SRC = 24
    e("s_cmp_lt_u32 s2, 192"); e("s_cbranch_scc1 %s_A", name)
    e("s_cmp_lt_u32 s2, 320"); e("s_cbranch_scc1 %s_B", name)
    e("s_cmp_lt_u32 s2, 464"); e("s_cbranch_scc1 %s_C", name)
    e("s_cmp_lt_u32 s2, 512"); e("s_cbranch_scc1 %s_D", name)
    e("s_cmp_lt_u32 s2, 640"); e("s_cbranch_scc1 %s_E", name)
    e("s_branch %s_F", name)

    LD = 32
    CC = 112
    FR = 128
    CS = 136
    VA, VD0, VD1, VC0, VC1 = 20, 21, 22, 23, 24
    T0, T1, T2, T3 = 25, 26, 27, 28

    def unit_body(i, nunits, B0, B1, dst0, dst1, vd0, vd1, colsum, store1=True):
        nst = (2 if store1 else 1) * i
        outstanding_after = 2 * (nunits - 1 - i) + nst
        e("s_waitcnt vmcnt(%d)", min(outstanding_after, 63))
        lo, hi = LD + 8 * i, LD + 8 * i + 4
        e("v_mfma_f32_16x16x32_bf16 v[%d:%d], v[%d:%d], v[%d:%d], 0", CC, CC + 3, lo, lo + 3, B0, B0 + 3)
        e("v_mfma_f32_16x16x32_bf16 v[%d:%d], v[%d:%d], v[%d:%d], 0", CC + 4, CC + 7, hi, hi + 3, B0, B0 + 3)
        e("v_mfma_f32_16x16x32_bf16 v[%d:%d], v[%d:%d], v[%d:%d], 0", CC + 8, CC + 11, lo, lo + 3, B1, B1 + 3)
        e("v_mfma_f32_16x16x32_bf16 v[%d:%d], v[%d:%d], v[%d:%d], 0", CC + 12, CC + 15, hi, hi + 3, B1, B1 + 3)
        for f in range(2):
            for q in range(4):
                e("v_cvt_pk_bf16_f32 v%d, v%d, v%d", FR + 4 * f + q, CC + 8 * f + 2 * q, CC + 8 * f + 2 * q + 1)
        e("buffer_store_dwordx4 v[%d:%d], v%d, s[4:7], s%d offen", FR, FR + 3, vd0, dst0)
        if store1:
            e("buffer_store_dwordx4 v[%d:%d], v%d, s[4:7], s%d offen", FR + 4, FR + 7, vd1, dst1)
        if colsum:
            e("v_mfma_f32_16x16x32_bf16 v[%d:%d], v[%d:%d], v[%d:%d], v[%d:%d]", CS, CS + 3, ONES, ONES + 3, FR, FR + 3, CS, CS + 3)
            e("v_mfma_f32_16x16x32_bf16 v[%d:%d], v[%d:%d], v[%d:%d], v[%d:%d]", CS + 4, CS + 7, ONES, ONES + 3, FR + 4, FR + 7, CS + 4, CS + 7)


    a.label(name + "_A")
    e("s_lshr_b32 s30, s2, 1")
    e("s_and_b32 s31, s2, 1")
    e("s_lshr_b32 s32, s30, 5")
    e("s_and_b32 s33, s30, 31")
    make_srd(a, SRC, 10, D * 3 * D * 2)
    e("v_mul_u32_u24 v%d, 3840, v%d", VA, VLO)
    e("v_lshl_add_u32 v%d, v%d, 4, v%d", VA, VQD, VA)
    e("s_mul_i32 s34, s31, %d", 10 * 32 * 3840)
    e("s_mul_i32 s35, s32, 1280"); e("s_add_u32 s34, s34, s35")
    e("s_mul_i32 s35, s33, 40"); e("s_add_u32 s34, s34, s35")
    for i in range(10):
        e("s_add_u32 s36, s34, %d", i * 32 * 3840)
        e("buffer_load_dwordx4 v[%d:%d], v%d, s[%d:%d], s36 offen", LD + 8 * i, LD + 8 * i + 3, VA, SRC, SRC + 3)
        e("s_add_u32 s36, s34, %d", i * 32 * 3840 + 16 * 3840)
        e("buffer_load_dwordx4 v[%d:%d], v%d, s[%d:%d], s36 offen", LD + 8 * i + 4, LD + 8 * i + 7, VA, SRC, SRC + 3)
    BF0, BF1 = 144, 148
    TMP = 152
    e("s_cmp_eq_u32 s32, 2"); e("s_cbranch_scc1 %s_Av", name)
    PH = 28
    PH = 40
    make_srd(a, PH, 12, H * DH * DH * 2)
    e("s_mul_i32 s37, s33, 800")
    e("v_mov_b32 v%d, 0x%x", T3, OOB)
    for ft in range(2):
        for cls in range(2):
            e("v_mul_u32_u24 v%d, 320, v%d", T0, VQD)
            e("v_lshl_add_u32 v%d, v%d, 1, v%d", T0, VLO, T0)
            if ft: e("v_add_u32 v%d, 32, v%d", T0, T0)
            e("v_cmp_gt_u32 vcc, %d, v%d", 3 if cls == 0 else 2, VQD)
            e("v_cndmask_b32 v%d, v%d, v%d, vcc", T0, T3, T0)
            if ft:
                e("v_cmp_gt_u32 vcc, 4, v%d", VLO)
                e("v_cndmask_b32 v%d, v%d, v%d, vcc", T0, T3, T0)
            for ee in range(4):
                el = cls * 4 + ee
                e("buffer_load_ushort v%d, v%d, s[%d:%d], s37 offen offset:%d", TMP + ft * 8 + el, T0, PH, PH + 3, el * 40)
    e("s_waitcnt vmcnt(0)")
    for ft, BF in enumerate((BF0, BF1)):
        for dw in range(4):
            e("v_lshl_or_b32 v%d, v%d, 16, v%d", BF + dw, TMP + ft * 8 + 2 * dw + 1, TMP + ft * 8 + 2 * dw)
    e("s_lshl_b32 s38, s32, 1"); e("s_and_b32 s39, s33, 1"); e("s_add_u32 s38, s38, s39")
    e("v_mov_b32 v%d, s38", T0)
    e("v_mov_b32 v%d, s38", T1)
    e("v_mov_b32 v%d, v%d", T2, VLO)
    e("v_add_u32 v%d, 16, v%d", T3, VLO)
    e("s_branch %s_A2", name)
    a.label(name + "_Av")
    e("s_waitcnt vmcnt(0)")
    for dw in range(4):
        e("v_mov_b32 v%d, v%d", BF0 + dw, SEL0 + dw)
        e("v_mov_b32 v%d, v%d", BF1 + dw, SEL1 + dw)
    e("s_and_b32 s39, s33, 1"); e("s_lshl_b32 s38, s39, 1")
    e("v_cmp_le_u32 vcc, 10, v%d", VLO)
    e("v_cndmask_b32 v%d, 0, 1, vcc", T0)
    e("v_mul_u32_u24 v%d, 10, v%d", T2, T0)
    e("v_sub_u32 v%d, v%d, v%d", T2, VLO, T2)
    e("v_add_u32 v%d, 20, v%d", T2, T2)
    e("v_add_u32 v%d, s38, v%d", T0, T0)
    e("s_add_u32 s38, s38, 1")
    e("v_mov_b32 v%d, s38", T1)
    e("v_add_u32 v%d, 26, v%d", T3, VLO)
    a.label(name + "_A2")
    a.fence()
    OOBR = 29
    e("v_mov_b32 v%d, 0x%x", OOBR, OOB)
    for (slot, uidx, vd, vc, ft) in ((T0, T2, VD0, VC0, 0), (T1, T3, VD1, VC1, 1)):
        e("v_lshrrev_b32 v%d, 2, v%d", vd, uidx)
        e("v_lshlrev_b32 v%d, 10, v%d", vd, vd)
        e("v_and_b32 v%d, 3, v%d", 30, uidx)
        e("v_lshl_add_u32 v%d, v%d, 2, v%d", 30, slot, 30)
        e("v_lshl_add_u32 v%d, v%d, 4, v%d", 30, VQD, 30)
        e("v_lshl_add_u32 v%d, v%d, 4, v%d", vd, 30, vd)
        e("v_lshl_add_u32 v%d, v%d, 5, v%d", vc, slot, uidx)
        e("v_lshlrev_b32 v%d, 2, v%d", vc, vc)
        if ft:
            e("v_cmp_gt_u32 vcc, 4, v%d", VLO)
            e("v_cndmask_b32 v%d, v%d, v%d, vcc", vd, OOBR, vd)
            e("v_cndmask_b32 v%d, v%d, v%d, vcc", vc, OOBR, vc)
        e("v_cmp_eq_u32 vcc, 0, v%d", VQD)
        e("v_cndmask_b32 v%d, v%d, v%d, vcc", vc, OOBR, vc)
    for i in range(8): e("v_mov_b32 v%d, 0", CS + i)
    e("s_lshr_b32 s38, s33, 1")
    e("s_mul_i32 s39, s38, 163840")
    e("s_mul_i32 s36, s31, %d", 10 * 8192)
    e("s_add_u32 s39, s39, s36"); e("s_add_u32 s39, s39, 0x%x", WQ)
    for i in range(10):
        e("s_add_u32 s36, s39, %d", i * 8192)
        unit_body(i, 10, BF0, BF1, 36, 36, VD0, VD1, True)
    e("s_lshl_b32 s36, s31, 13"); e("s_lshl_b32 s37, s38, 9"); e("s_add_u32 s36, s36, s37"); e("s_add_u32 s36, s36, 0x%x", CSQ)
    e("buffer_store_dword v%d, v%d, s[4:7], s36 offen", CS, VC0)
    e("buffer_store_dword v%d, v%d, s[4:7], s36 offen", CS + 4, VC1)
    e("s_endpgm")

    a.label(name + "_B")
    e("s_sub_u32 s30, s2, 192")
    e("s_lshr_b32 s31, s30, 3")
    e("s_lshr_b32 s32, s30, 1"); e("s_and_b32 s32, s32, 3")
    e("s_and_b32 s33, s30, 1")
    e("s_and_b32 s34, s31, 7"); e("s_mul_i32 s35, s34, 7")
    e("s_cmp_eq_u32 s34, 7"); e("s_cselect_b32 s35, 48, s35")
    e("s_lshr_b32 s34, s31, 3"); e("s_mul_i32 s34, s34, 54"); e("s_add_u32 s35, s35, s34")
    e("s_lshl_b32 s34, s32, 1"); e("s_add_u32 s35, s35, s34")
    make_srd(a, SRC, 16, D * F * 2)
    e("v_mul_u32_u24 v%d, 3456, v%d", VA, VLO)
    e("v_lshl_add_u32 v%d, v%d, 4, v%d", VA, VQD, VA)
    e("s_mul_i32 s36, s33, %d", 10 * 32 * 3456)
    e("s_lshl_b32 s37, s35, 5"); e("s_add_u32 s36, s36, s37")
    for i in range(10):
        e("s_add_u32 s37, s36, %d", i * 32 * 3456)
        e("buffer_load_dwordx4 v[%d:%d], v%d, s[%d:%d], s37 offen", LD + 8 * i, LD + 8 * i + 3, VA, SRC, SRC + 3)
        e("s_add_u32 s37, s36, %d", i * 32 * 3456 + 16 * 3456)
        e("buffer_load_dwordx4 v[%d:%d], v%d, s[%d:%d], s37 offen", LD + 8 * i + 4, LD + 8 * i + 7, VA, SRC, SRC + 3)
    for i in range(8): e("v_mov_b32 v%d, 0", CS + i)
    e("v_mov_b32 v%d, v%d", VD0, VL16)
    e("v_mov_b32 v%d, v%d", VD1, VL16)
    e("s_cmp_eq_u32 s32, 3"); e("s_cselect_b32 s38, 0x%x, 0", OOB)
    e("v_add_u32 v%d, s38, v%d", VD1, VD1)
    e("s_mul_i32 s39, s31, 143360"); e("s_mul_i32 s40, s33, %d", 70 * 1024); e("s_add_u32 s39, s39, s40")
    e("s_lshl_b32 s40, s32, 11"); e("s_add_u32 s39, s39, s40"); e("s_add_u32 s39, s39, 0x%x", W1)
    for i in range(10):
        e("s_add_u32 s40, s39, %d", i * 7 * 1024)
        e("s_add_u32 s41, s39, %d", i * 7 * 1024 + 1024)
        unit_body(i, 10, SEL0, SEL1, 40, 41, VD0, VD1, True)
    e("v_lshlrev_b32 v%d, 2, v%d", VC0, VLO)
    e("v_mov_b32 v%d, 0x%x", T3, OOB)
    e("v_cmp_eq_u32 vcc, 0, v%d", VQD)
    e("v_cndmask_b32 v%d, v%d, v%d, vcc", VC0, T3, VC0)
    e("v_add_u32 v%d, s38, v%d", VC1, VC0)
    e("s_mul_i32 s40, s33, %d", CS1_G); e("s_lshl_b32 s41, s35, 6"); e("s_add_u32 s40, s40, s41"); e("s_add_u32 s40, s40, 0x%x", CS1)
    e("buffer_store_dword v%d, v%d, s[4:7], s40 offen", CS, VC0)
    e("buffer_store_dword v%d, v%d, s[4:7], s40 offen offset:64", CS + 4, VC1)
    e("s_endpgm")

    a.label(name + "_C")
    e("s_sub_u32 s30, s2, 320")
    e("s_mul_hi_u32 s31, s30, 0x2AAAAAAB")
    e("s_mul_i32 s32, s31, 6"); e("s_sub_u32 s33, s30, s32")
    e("s_mul_hi_u32 s34, s31, 0x55555556")
    e("s_mul_i32 s32, s34, 3"); e("s_sub_u32 s32, s31, s32")
    make_srd(a, SRC, 20, F * D * 2)
    e("v_mul_u32_u24 v%d, 1280, v%d", VA, VLO)
    e("v_lshl_add_u32 v%d, v%d, 4, v%d", VA, VQD, VA)
    e("s_mul_i32 s36, s33, %d", 9 * 32 * 1280)
    e("s_mul_i32 s37, s34, 160"); e("s_add_u32 s36, s36, s37")
    e("s_lshl_b32 s37, s32, 6"); e("s_add_u32 s36, s36, s37")
    for i in range(9):
        e("s_add_u32 s37, s36, %d", i * 32 * 1280)
        e("buffer_load_dwordx4 v[%d:%d], v%d, s[%d:%d], s37 offen", LD + 8 * i, LD + 8 * i + 3, VA, SRC, SRC + 3)
        e("s_add_u32 s37, s36, %d", i * 32 * 1280 + 16 * 1280)
        e("buffer_load_dwordx4 v[%d:%d], v%d, s[%d:%d], s37 offen", LD + 8 * i + 4, LD + 8 * i + 7, VA, SRC, SRC + 3)
    e("v_mov_b32 v%d, v%d", VD0, VL16)
    e("v_mov_b32 v%d, v%d", VD1, VL16)
    e("s_cmp_eq_u32 s32, 2"); e("s_cselect_b32 s38, 0x%x, 0", OOB)
    e("v_add_u32 v%d, s38, v%d", VD1, VD1)
    e("s_mul_i32 s39, s34, 286720"); e("s_mul_i32 s40, s33, %d", 45 * 1024); e("s_add_u32 s39, s39, s40")
    e("s_lshl_b32 s40, s32, 11"); e("s_add_u32 s39, s39, s40"); e("s_add_u32 s39, s39, 0x%x", W2)
    for i in range(9):
        e("s_add_u32 s40, s39, %d", i * 5 * 1024)
        e("s_add_u32 s41, s39, %d", i * 5 * 1024 + 1024)
        unit_body(i, 9, SEL0, SEL1, 40, 41, VD0, VD1, False)
    e("s_endpgm")

    a.label(name + "_D")
    e("s_sub_u32 s30, s2, 464")
    e("s_lshr_b32 s31, s30, 1")
    e("s_and_b32 s33, s30, 1")
    e("s_mul_hi_u32 s34, s31, 0x55555556")
    e("s_mul_i32 s32, s34, 3"); e("s_sub_u32 s32, s31, s32")
    make_srd(a, SRC, 14, D * D * 2)
    e("s_mul_i32 s36, s33, %d", 320 * 1280)
    e("s_mul_i32 s37, s34, 160"); e("s_add_u32 s36, s36, s37")
    e("s_lshl_b32 s37, s32, 6"); e("s_add_u32 s36, s36, s37")
    e("v_and_b32 v%d, 3, v%d", T0, VLO)
    e("v_lshrrev_b32 v%d, 2, v%d", T1, VLO)
    e("v_mul_u32_u24 v%d, 5, v%d", T1, T1)
    for i in range(10):
        wl, s = i // 5, i % 5
        for half in range(2):
            e("v_add_u32 v%d, %d, v%d", T2, 8 * s + 4 * half, T0)
            e("v_mul_u32_u24 v%d, 52, v%d", T3, T2)
            e("v_lshrrev_b32 v%d, 8, v%d", T3, T3)
            e("v_mul_u32_u24 v%d, 15, v%d", T3, T3)
            e("v_add3_u32 v%d, v%d, v%d, v%d", T3, T3, T1, T2)
            if wl: e("v_add_u32 v%d, 160, v%d", T3, T3)
            e("v_mul_u32_u24 v%d, 1280, v%d", T3, T3)
            e("v_lshl_add_u32 v%d, v%d, 4, v%d", VA, VQD, T3)
            e("buffer_load_dwordx4 v[%d:%d], v%d, s[%d:%d], s36 offen", LD + 8 * i + 4 * half, LD + 8 * i + 4 * half + 3, VA, SRC, SRC + 3)
    e("v_mov_b32 v%d, v%d", VD0, VL16)
    e("v_mov_b32 v%d, v%d", VD1, VL16)
    e("s_cmp_eq_u32 s32, 2"); e("s_cselect_b32 s38, 0x%x, 0", OOB)
    e("v_add_u32 v%d, s38, v%d", VD1, VD1)
    e("s_mul_i32 s39, s34, %d", 100 * 1024); e("s_mul_i32 s40, s33, %d", 50 * 1024); e("s_add_u32 s39, s39, s40")
    e("s_lshl_b32 s40, s32, 11"); e("s_add_u32 s39, s39, s40"); e("s_add_u32 s39, s39, 0x%x", WO)
    for i in range(10):
        e("s_add_u32 s40, s39, %d", i * 5 * 1024)
        e("s_add_u32 s41, s39, %d", i * 5 * 1024 + 1024)
        unit_body(i, 10, SEL0, SEL1, 40, 41, VD0, VD1, False)
    e("s_endpgm")

    a.label(name + "_E")
    e("s_sub_u32 s30, s2, 512")
    make_srd(a, SRC, 8, S * D * 2)
    e("v_mul_u32_u24 v%d, 1280, v%d", VA, VLO)
    e("v_lshl_add_u32 v%d, v%d, 3, v%d", VA, VQD, VA)
    e("s_mul_i32 s36, s30, %d", 16 * 1280)
    XR = 32
    for k in range(20):
        e("buffer_load_dwordx2 v[%d:%d], v%d, s[%d:%d], s36 offen offset:%d", XR + 4 * k, XR + 4 * k + 1, VA, SRC, SRC + 3, k * 64)
        e("buffer_load_dwordx2 v[%d:%d], v%d, s[%d:%d], s36 offen offset:%d", XR + 4 * k + 2, XR + 4 * k + 3, VA, SRC, SRC + 3, k * 64 + 32)
    e("v_mov_b32 v%d, 0", T0); e("v_mov_b32 v%d, 0", T1)
    e("s_mul_i32 s37, s30, 20480"); e("s_add_u32 s37, s37, 0x%x", XF[0])
    for k in range(20):
        e("s_waitcnt vmcnt(%d)", min(2 * (19 - k) + k, 63))
        if k and k % 4 == 0: e("s_add_u32 s37, s37, 4096")
        e("buffer_store_dwordx4 v[%d:%d], v%d, s[4:7], s37 offen offset:%d", XR + 4 * k, XR + 4 * k + 3, VL16, (k % 4) * 1024)
        for q in range(4):
            e("v_dot2_f32_bf16 v%d, v%d, v%d, v%d", T0, XR + 4 * k + q, ONES, T0)
            e("v_dot2_f32_bf16 v%d, v%d, v%d, v%d", T1, XR + 4 * k + q, XR + 4 * k + q, T1)
    for T in (T0, T1):
        e("v_mov_b32 v%d, v%d", T2, T)
        e("v_permlane32_swap_b32 v%d, v%d", T, T2)
        e("v_add_f32 v%d, v%d, v%d", T, T, T2)
        e("v_mov_b32 v%d, v%d", T2, T)
        e("v_permlane16_swap_b32 v%d, v%d", T, T2)
        e("v_add_f32 v%d, v%d, v%d", T, T, T2)
    SV = 112
    e("v_cmp_eq_u32 vcc, 0, v%d", VQD)
    e("v_cndmask_b32 v%d, 0, v%d, vcc", SV, T0)
    e("v_cndmask_b32 v%d, 0, v%d, vcc", SV + 1, T1)
    e("v_mov_b32 v%d, 0", SV + 2); e("v_mov_b32 v%d, 0", SV + 3)
    e("v_lshlrev_b32 v%d, 6, v%d", T2, VLO)
    e("v_lshl_add_u32 v%d, v%d, 4, v%d", T2, VQD, T2)
    e("s_lshl_b32 s37, s30, 10"); e("s_add_u32 s37, s37, 0x%x", ST[0])
    e("buffer_store_dwordx4 v[%d:%d], v%d, s[4:7], s37 offen", SV, SV + 3, T2)
    e("s_endpgm")

    a.label(name + "_F")
    e("s_sub_u32 s30, s2, 640")
    for i in range(4): e("v_mov_b32 v%d, 0", 32 + i)
    e("s_lshl_b32 s36, s30, 15"); e("s_add_u32 s36, s36, 0x%x", KV[0])
    for i in range(32):
        if i and i % 4 == 0: e("s_add_u32 s36, s36, 4096")
        e("buffer_store_dwordx4 v[32:35], v%d, s[4:7], s36 offen offset:%d", VL16, (i % 4) * 1024)
    e("s_mul_i32 s36, s30, 286720"); e("s_add_u32 s36, s36, 0x%x", W2 + 54 * 5120)
    for i in range(10):
        if i and i % 4 == 0: e("s_add_u32 s36, s36, 4096")
        e("buffer_store_dwordx4 v[32:35], v%d, s[4:7], s36 offen offset:%d", VL16, (i % 4) * 1024)
    a.label(name + "_end")
    e("s_endpgm")
    return dict(name=name, grid=PREP_TASKS, block=64, lds=0, vgpr=168, accum=None)
```

```python
import sys
sys.path.insert(0, "gen")
from common import *
from prep import gen_prep
from p1 import gen_p1
from p24 import gen_p2, gen_p4
from p3 import gen_p3

def build(upto=99):
    a = Asm()
    ks = []
    ks.append(gen_prep(a))
    for layer in range(2):
        ks.append(gen_p1(a, layer, "p1l%d_kernel" % layer))
        ks.append(gen_p2(a, layer, "p2l%d_kernel" % layer))
        ks.append(gen_p3(a, layer, "p3l%d_kernel" % layer))
        ks.append(gen_p4(a, layer, "p4l%d_kernel" % layer))
    hdr = ""
    for k in ks[:upto]:
        hdr += "; @launch kernel=%s grid=(%d,1,1) block=(%d,1,1) lds=%d\n" % (k["name"], k["grid"], k["block"], k["lds"])
    st = {}
    txt = hdr + HEADER + a.text(st) + '.section .rodata,"a"\n'
    for k in ks:
        txt += kernel_desc(k["name"], k["vgpr"], accum=k["accum"])
    return txt, st

if __name__ == "__main__":
    out = sys.argv[1]
    upto = int(sys.argv[2]) if len(sys.argv) > 2 else 99
    txt, st = build(upto)
    open(out, "w").write(txt)
    print("wrote", out, len(txt), "bytes", st)
```

```python
from asmlib import *
from layout import *

def make_srd(a, dst, ptr, nbytes):
    a.e("s_mov_b32 s%d, s%d", dst, ptr)
    a.e("s_and_b32 s%d, s%d, 0xffff", dst + 1, ptr + 1)
    a.e("s_mov_b32 s%d, 0x%x", dst + 2, nbytes)
    a.e("s_mov_b32 s%d, 0x20000", dst + 3)

def build_selectors(a, vlane_lo4, vqd, sel0, sel1, t0, t1):
    for k, sel in enumerate((sel0, sel1)):
        a.e("v_lshlrev_b32 v%d, 3, v%d", t0, vqd)
        a.e("v_sub_u32 v%d, v%d, v%d", t0, vlane_lo4, t0)
        if k: a.e("v_add_u32 v%d, 16, v%d", t0, t0)
        for dw in range(4):
            a.e("v_mov_b32 v%d, 0", sel + dw)
            a.e("v_mov_b32 v%d, 0x3f80", t1)
            a.e("v_cmp_eq_u32 vcc, %d, v%d", 2 * dw, t0)
            a.e("v_cndmask_b32 v%d, v%d, v%d, vcc", sel + dw, sel + dw, t1)
            a.e("v_mov_b32 v%d, 0x3f800000", t1)
            a.e("v_cmp_eq_u32 vcc, %d, v%d", 2 * dw + 1, t0)
            a.e("v_cndmask_b32 v%d, v%d, v%d, vcc", sel + dw, sel + dw, t1)

import os
DIAG = bool(int(os.environ.get("DIAG", "0")))
PF = bool(int(os.environ.get("PF", "1")))
STB0 = 50
def stamp(a, i):
    if DIAG: a.e("s_memtime s[%d:%d]", STB0 + 2 * i, STB0 + 2 * i + 1)
def stamp_begin(a):
    if DIAG:
        a.e("s_memrealtime s[82:83]")
        for i in range(1, 16): a.e("s_mov_b32 s%d, 0", STB0 + 2 * i)
        stamp(a, 0)
def stamp_end(a, kidx, s_wave, srd=4):
    if not DIAG: return
    stamp(a, 14)
    a.e("s_waitcnt vmcnt(0) lgkmcnt(0)")
    stamp(a, 15)
    a.e("s_memrealtime s[84:85]")
    a.e("s_waitcnt lgkmcnt(0)")
    a.e("s_mov_b64 exec, 1")
    a.e("s_lshl_b32 s86, s2, 2"); a.e("s_add_u32 s86, s86, s%d", s_wave); a.e("s_lshl_b32 s86, s86, 7")
    a.e("s_add_u32 s86, s86, 0x%x", STAMP + kidx * 0x40000)
    a.e("v_mov_b32 v1, 0")
    for i in range(16):
        a.e("v_mov_b32 v2, s%d", STB0 + 2 * i)
        a.e("buffer_store_dword v2, v1, s[%d:%d], s86 offen offset:%d", srd, srd + 3, 4 * i)
    a.e("v_mov_b32 v2, s82"); a.e("buffer_store_dword v2, v1, s[%d:%d], s86 offen offset:64", srd, srd + 3)
    a.e("v_mov_b32 v2, s84"); a.e("buffer_store_dword v2, v1, s[%d:%d], s86 offen offset:68", srd, srd + 3)

def code_prefetch(a, name, vtmp=250, stmp=44, single_wave=False):
    e = a.e
    e("s_getpc_b64 s[%d:%d]", stmp, stmp + 1)
    a.label(name + "_pc")
    e("s_lshr_b32 s%d, s2, 3", stmp + 2)
    e("s_and_b32 s%d, s%d, 31", stmp + 2, stmp + 2)
    e("s_lshl_b32 s%d, s%d, 10", stmp + 2, stmp + 2)
    e("v_lshrrev_b32 v%d, 6, v0", vtmp)
    e("v_lshlrev_b32 v%d, 15, v%d", vtmp, vtmp)
    e("v_and_b32 v%d, 63, v0", vtmp + 1)
    e("v_lshl_add_u32 v%d, v%d, 4, v%d", vtmp, vtmp + 1, vtmp)
    e("v_add_u32 v%d, s%d, v%d", vtmp, stmp + 2, vtmp)
    e("v_min_u32 v%d, %s_end-%s_pc-12, v%d" % (vtmp, name, name, vtmp))
    e("global_load_dwordx4 v[%d:%d], v%d, s[%d:%d]", vtmp + 2, vtmp + 5, vtmp, stmp, stmp + 1)
```

```python
import re

TRANS = ("v_exp_f32", "v_log_f32", "v_rcp_f32", "v_rsq_f32", "v_sqrt_f32", "v_sin_f32", "v_cos_f32")
_REG = re.compile(r"^(-?\|?)([vas])(\d+)\|?$")
_REGR = re.compile(r"^(-?\|?)([vas])\[(\d+):(\d+)\]\|?$")

def regs_of(tok):
    tok = tok.strip()
    m = _REG.match(tok)
    if m:
        return [(m.group(2), int(m.group(3)))]
    m = _REGR.match(tok)
    if m:
        return [(m.group(2), i) for i in range(int(m.group(3)), int(m.group(4)) + 1)]
    if tok == "vcc":
        return [("s", 106), ("s", 107)]
    if tok == "vcc_lo": return [("s", 106)]
    if tok == "vcc_hi": return [("s", 107)]
    if tok == "exec":
        return [("s", 126), ("s", 127)]
    if tok == "exec_lo": return [("s", 126)]
    if tok == "exec_hi": return [("s", 127)]
    if tok == "m0":
        return [("s", 124)]
    return []

def split_ops(s):
    out, depth, cur = [], 0, ""
    for ch in s:
        if ch in "[(": depth += 1
        if ch in "])": depth -= 1
        if ch == "," and depth == 0:
            out.append(cur.strip()); cur = ""
        else:
            cur += ch
    if cur.strip(): out.append(cur.strip())
    return out

class Ins:
    __slots__ = ("text", "mn", "kind", "wr", "rd", "srcC", "srcAB", "passes", "trans", "dpp", "lds", "wide_store", "nop", "permlane", "lane_rd", "sdst_valu", "mods")

def parse(text):
    t = text.split(";")[0].split("//")[0].strip()
    I = Ins(); I.text = text
    I.wr = []; I.rd = []; I.srcC = []; I.srcAB = []; I.passes = 0; I.trans = False; I.dpp = False
    I.lds = False; I.wide_store = False; I.nop = 0; I.permlane = False; I.lane_rd = False; I.sdst_valu = []
    sp = t.split(None, 1)
    mn = sp[0]; rest = sp[1] if len(sp) > 1 else ""
    I.mn = mn
    ops = split_ops(rest)
    mods = []
    if ops:
        last = ops[-1].split()
        ops[-1] = last[0]
        mods = last[1:]
    I.mods = mods
    R = [regs_of(o) for o in ops]
    if mn.startswith("v_mfma"):
        I.kind = "mfma"
        I.wr = R[0]; I.srcAB = R[1] + R[2]; I.srcC = R[3]; I.rd = I.srcAB + I.srcC
        I.passes = 4 if ("16x16x32" in mn or "16x16x16" in mn) else 8
    elif mn.startswith("v_"):
        I.kind = "valu"
        base = mn.replace("_e32", "").replace("_e64", "").replace("_dpp", "")
        I.trans = base in TRANS
        I.dpp = any(m.startswith(("row_", "quad_perm", "wave_")) for m in mods)
        if base.startswith("v_cmp"):
            I.wr = R[0]; I.rd = sum(R[1:], [])
            I.sdst_valu = R[0]
        elif base in ("v_readfirstlane_b32", "v_readlane_b32"):
            I.wr = R[0]; I.rd = sum(R[1:], []); I.lane_rd = True; I.sdst_valu = R[0]
        elif base in ("v_add_co_u32", "v_sub_co_u32", "v_addc_co_u32", "v_subb_co_u32"):
            I.wr = R[0] + R[1]; I.rd = sum(R[2:], []); I.sdst_valu = R[1]
        elif base.startswith("v_permlane") and "swap" in base:
            I.wr = R[0] + R[1]; I.rd = R[0] + R[1]; I.permlane = True
        elif base in ("v_fmac_f32", "v_dot2c_f32_bf16", "v_writelane_b32"):
            I.wr = R[0]; I.rd = sum(R, [])
        elif base == "v_cndmask_b32":
            I.wr = R[0]; I.rd = sum(R[1:], [])
            if len(ops) == 3: I.rd += regs_of("vcc")
        else:
            I.wr = R[0]; I.rd = sum(R[1:], [])
    elif mn.startswith(("buffer_", "global_")):
        I.kind = "vmem"
        I.lds = ("lds" in mods) or ("_lds_" in mn)
        if mn in ("buffer_wbl2", "buffer_inv"):
            pass
        elif "atomic" in mn:
            if mn.startswith("buffer_"):
                I.rd = sum(R, [])
                if "sc0" in mods: I.wr = R[0]
            else:
                if "sc0" in mods:
                    I.wr = R[0]; I.rd = sum(R[1:], [])
                else:
                    I.rd = sum(R, [])
        elif "load" in mn:
            if I.lds:
                I.rd = sum(R, []) + regs_of("m0")
            else:
                I.wr = R[0]; I.rd = sum(R[1:], [])
        else:
            I.rd = sum(R, [])
            if "x4" in mn or "x3" in mn:
                I.wide_store = True
                I.srcC = R[0] if mn.startswith("buffer_") else R[1]
    elif mn.startswith("ds_"):
        I.kind = "ds"
        if mn.startswith("ds_read") or mn.startswith("ds_bpermute") or mn.startswith("ds_permute") or mn.startswith("ds_swizzle"):
            I.wr = R[0]; I.rd = sum(R[1:], [])
        else:
            I.rd = sum(R, [])
    elif mn == "s_nop":
        I.kind = "nop"; I.nop = int(ops[0], 0) + 1
    elif mn.startswith("s_"):
        I.kind = "salu"
        if mn.startswith(("s_cmp", "s_cbranch", "s_branch", "s_waitcnt", "s_barrier", "s_endpgm", "s_setprio", "s_sleep", "s_bitcmp")):
            I.rd = sum(R, [])
        else:
            I.wr = R[0] if R else []; I.rd = sum(R[1:], [])
            if "saveexec" in mn: I.wr = I.wr + regs_of("exec")
    else:
        raise ValueError("unknown instruction: " + text)
    return I

class Asm:
    def __init__(self):
        self.lines = []
        self.uid = 0
    def __call__(self, s):
        for l in s.split("\n"):
            self.lines.append(("raw", l))
    def e(self, fmt, *a):
        self.lines.append(("ins", fmt % a if a else fmt))
    def c(self, s):
        self.lines.append(("raw", "  ; " + s))
    def label(self, name):
        self.lines.append(("label", name))
    def newlabel(self, base="L"):
        self.uid += 1
        return f"{base}_{self.uid}"
    def cond_begin(self): self.lines.append(("cb", ""))
    def cond_end(self): self.lines.append(("ce", ""))
    def fence(self):
        self.lines.append(("ins", "s_nop 15")); self.lines.append(("ins", "s_nop 3"))

    def text(self, stats=None):
        out = []
        pos = 0
        wr = {}
        srcC = {}
        stdata = {}
        nnop = 0
        for kind, s in self.lines:
            if kind == "raw":
                out.append(s); continue
            if kind == "label":
                out.append(s + ":"); continue
            if kind == "cb":
                cpos = pos; continue
            if kind == "ce":
                pos = cpos; continue
            I = parse(s)
            need = 0
            def req(prod_pos, ws):
                nonlocal need
                have = pos - prod_pos - 1
                if ws - have > need: need = ws - have
            isv = lambda r: r[0] in "va"
            if I.kind in ("mfma", "valu", "vmem", "ds", "salu"):
                for r in I.rd:
                    w = wr.get(r)
                    if not w: continue
                    p, k, info = w
                    if k == "mfma":
                        ps = info["passes"]
                        if I.kind == "mfma":
                            if r in I.srcC and r not in I.srcAB:
                                if I.srcC == info["dst"] and I.passes == ps:
                                    pass
                                else:
                                    req(p, {2: 4, 4: 6, 8: 10}[ps])
                            if r in I.srcAB:
                                req(p, {2: 5, 4: 8, 8: 12}[ps])
                        else:
                            req(p, {2: 5, 4: 8, 8: 12}[ps])
                    elif k == "valu":
                        if isv(r):
                            if I.kind == "mfma": req(p, 2)
                            if I.kind == "valu":
                                if info["trans"] and not I.trans: req(p, 1)
                                if info["trans"] and I.trans: req(p, 1)
                                if I.dpp: req(p, 2)
                                if I.permlane: req(p, 2)
                                if I.lane_rd: req(p, 1)
                        else:
                            if I.kind == "valu": req(p, 4 if I.lane_rd else 2)
                            if I.kind == "vmem": req(p, 5)
                            if I.kind == "salu": req(p, 4)
                            if I.kind == "mfma": req(p, 4)
                    elif k == "salu":
                        if r == ("s", 124) and (I.lds): req(p, 1)
                        if r in (("s", 126), ("s", 127)) : pass
                for r in I.wr:
                    w = wr.get(r)
                    if w and w[1] == "mfma" and I.kind != "mfma":
                        req(w[0], {2: 5, 4: 8, 8: 12}[w[2]["passes"]])
                    if w and w[1] == "mfma" and I.kind == "mfma":
                        if not (I.srcC == w[2]["dst"] and I.wr == w[2]["dst"]):
                            req(w[0], {2: 5, 4: 8, 8: 12}[w[2]["passes"]])
                    if I.kind in ("valu",):
                        c = srcC.get(r)
                        if c: req(c[0], {2: 1, 4: 3, 8: 7}[c[1]])
                    if I.kind in ("valu", "vmem", "ds", "mfma"):
                        sd = stdata.get(r)
                        if sd is not None: req(sd, 2)
                ew = wr.get(("s", 126))
                if ew and (I.kind == "mfma" or (I.kind == "valu" and (I.dpp or I.permlane or I.lane_rd))):
                    req(ew[0], 4 if ew[1] == "valu" else 1)
            while need > 0:
                n = min(need, 16)
                out.append("  s_nop %d" % (n - 1)); pos += n; need -= n; nnop += 1
            out.append("  " + s)
            if I.kind == "nop":
                pos += I.nop; continue
            for r in I.wr:
                if I.kind == "mfma":
                    wr[r] = (pos, "mfma", {"passes": I.passes, "dst": I.wr})
                elif I.kind == "valu":
                    wr[r] = (pos, "valu", {"trans": I.trans})
                elif I.kind == "salu":
                    wr[r] = (pos, "salu", None)
                else:
                    wr[r] = (pos, "mem", None)
            if I.kind == "mfma":
                for r in I.srcC: srcC[r] = (pos, I.passes)
            if I.wide_store:
                for r in I.srcC: stdata[r] = pos
            pos += 1
        if stats is not None:
            stats["nops"] = nnop
        return "\n".join(out) + "\n"

def vr(b, n=1):
    return f"v{b}" if n == 1 else f"v[{b}:{b+n-1}]"
def ar(b, n=1):
    return f"a{b}" if n == 1 else f"a[{b}:{b+n-1}]"
def sr(b, n=1):
    return f"s{b}" if n == 1 else f"s[{b}:{b+n-1}]"

class Pool:
    def __init__(self, start, end, name):
        self.p = start; self.end = end; self.name = name; self.hi = start
    def alloc(self, n=1, align=1):
        if n > 1 and align == 1: align = 2
        b = (self.p + align - 1) // align * align
        self.p = b + n
        self.hi = max(self.hi, self.p)
        assert self.p <= self.end, f"{self.name} pool exhausted ({self.p} > {self.end})"
        return b
    def mark(self): return self.p
    def release(self, m): self.p = m

def kernel_begin(a, name):
    a(f".globl {name}\n.p2align 8\n.type {name},@function\n{name}:")

def kernel_desc(name, vgpr, sgpr=102, accum=None, wg_y=False):
    if accum is None:
        accum = (vgpr + 3) // 4 * 4
    s = f""".p2align 6
.amdhsa_kernel {name}
  .amdhsa_next_free_vgpr {vgpr}
  .amdhsa_next_free_sgpr {sgpr}
  .amdhsa_accum_offset {accum}
  .amdhsa_group_segment_fixed_size 0
  .amdhsa_kernarg_size 96
  .amdhsa_user_sgpr_count 2
  .amdhsa_user_sgpr_kernarg_segment_ptr 1
  .amdhsa_system_sgpr_workgroup_id_x 1
"""
    if wg_y:
        s += "  .amdhsa_system_sgpr_workgroup_id_y 1\n"
    s += """  .amdhsa_float_denorm_mode_32 3
  .amdhsa_float_denorm_mode_16_64 3
.end_amdhsa_kernel
"""
    return s

HEADER = '.amdgcn_target "amdgcn-amd-amdhsa--gfx950"\n.text\n'
```

```python
from asmlib import *
from layout import *
import os, struct
DIAG = bool(int(os.environ.get("DIAG", "0")))
LOG2E = 1.4426950408889634
def f32bits(x):
    return struct.unpack("<I", struct.pack("<f", x))[0]

class VM:
    def __init__(self): self.n = 0
    def issue(self): self.n += 1; return self.n - 1
    def cnt(self, idx): return min(self.n - 1 - idx, 63)
    def wait_for(self, a, idx, extra=""):
        a.e("s_waitcnt vmcnt(%d)%s", self.cnt(idx), extra)

def make_srd(a, dst, ptr, nbytes):
    a.e("s_mov_b32 s%d, s%d", dst, ptr)
    a.e("s_and_b32 s%d, s%d, 0xffff", dst + 1, ptr + 1)
    a.e("s_mov_b32 s%d, 0x%x", dst + 2, nbytes)
    a.e("s_mov_b32 s%d, 0x20000", dst + 3)

def build_selectors(a, vlane_lo4, vqd, sel0, sel1, t0, t1):
    for k, sel in enumerate((sel0, sel1)):
        a.e("v_lshlrev_b32 v%d, 3, v%d", t0, vqd)
        a.e("v_sub_u32 v%d, v%d, v%d", t0, vlane_lo4, t0)
        if k: a.e("v_add_u32 v%d, 16, v%d", t0, t0)
        for dw in range(4):
            a.e("v_mov_b32 v%d, 0", sel + dw)
            a.e("v_mov_b32 v%d, 0x3f80", t1)
            a.e("v_cmp_eq_u32 vcc, %d, v%d", 2 * dw, t0)
            a.e("v_cndmask_b32 v%d, v%d, v%d, vcc", sel + dw, sel + dw, t1)
            a.e("v_mov_b32 v%d, 0x3f800000", t1)
            a.e("v_cmp_eq_u32 vcc, %d, v%d", 2 * dw + 1, t0)
            a.e("v_cndmask_b32 v%d, v%d, v%d, vcc", sel + dw, sel + dw, t1)

def code_prefetch(a, start, end, vtmp, stmp, nwaves_kb=32):
    e = a.e
    lab = a.newlabel("pc")
    e("s_getpc_b64 s[%d:%d]", stmp, stmp + 1)
    a.label(lab)
    if start is None:
        start = lab
    else:
        e("s_add_u32 s%d, s%d, %s-%s" % (stmp, stmp, start, lab))
        e("s_addc_u32 s%d, s%d, %s" % (stmp + 1, stmp + 1, "0"))
    e("s_lshr_b32 s%d, s2, 3", stmp + 2)
    e("s_and_b32 s%d, s%d, 31", stmp + 2, stmp + 2)
    e("s_lshl_b32 s%d, s%d, 10", stmp + 2, stmp + 2)
    e("v_lshrrev_b32 v%d, 6, v0", vtmp)
    e("v_lshlrev_b32 v%d, 15, v%d", vtmp, vtmp)
    e("v_and_b32 v%d, 63, v0", vtmp + 1)
    e("v_lshl_add_u32 v%d, v%d, 4, v%d", vtmp, vtmp + 1, vtmp)
    e("v_add_u32 v%d, s%d, v%d", vtmp, stmp + 2, vtmp)
    e("v_min_u32 v%d, %s-%s-16, v%d" % (vtmp, end, start, vtmp))
    e("global_load_dwordx4 v[%d:%d], v%d, s[%d:%d]", vtmp + 2, vtmp + 5, vtmp, stmp, stmp + 1)
```

```python
S, D, H, DH, F = 2048, 640, 32, 20, 1728
XF = [0x0000000, 0x0300000, 0x0600000, 0x0900000]
XF_STRIDE = 0x300000
ST = [0x0C00000, 0x0C20000, 0x0C40000, 0x0C60000]
ST_STRIDE = 0x20000
CNT = 0x0D00000
CNT_BYTES = 2 * 5 * 16 * 128
WQ = 0x0E00000
WQ_J = 163840
WQ_B = 102400
WO = 0x1100000
W1 = 0x1200000
W2 = 0x1500000
KV = [0x1800000, 0x1830000]
KV_STRIDE = 0x30000
KV_HEAD = 6144
OB = [0x1900000, 0x1C00000]
OB_STRIDE = 0x300000
HB = [0x2000000, 0x2800000]
HB_STRIDE = 0x800000
STAMP = 0x3800000
WS_REC = 0x4000000
OOB = 0x40000000
TB1 = [cg * 54 + o for cg in range(2) for o in (0, 7, 14, 21, 28, 35, 42, 48)]
NT1 = [7, 7, 7, 7, 7, 7, 6, 6] * 2
```

```python
from common import *

SW, SRB, SM, SL, STB, SCB = 8, 9, 10, 11, 12, 13
SXIN, SX1, SX2, SSTIN, SST1, SST2, SO, SH, SKV, SCNT, SAB = 48, 49, 50, 51, 52, 53, 54, 55, 56, 57, 58
STT0 = 59
STTW = 60
SM0 = 61
SRD_B1, SRD_B2, SRD_OUT = 36, 40, 44
VL16, VL16B, VL16C, VLO, VQD, VZ = 1, 2, 3, 4, 5, 6
VSTAMP = 6
LDS_B = 102400

class K:
    def __init__(self, a, name):
        self.a = a; self.e = a.e; self.name = name; self.nst = 0

def stamp(k, i):
    if not DIAG: return
    e = k.e
    e("s_memtime s[98:99]")
    e("s_mov_b32 m0, %d", k.layer * 32 + i)
    e("s_waitcnt lgkmcnt(0)")
    e("v_writelane_b32 v%d, s98, m0", VSTAMP)

def lds_addr(off):
    return (VL16, VL16B, VL16C)[off >> 16], off & 0xffff

def dma(k, vm, goff_sgpr, gimm, lds_off, per_wave_m0=True):
    e = k.e
    e("s_add_u32 m0, s%d, %d", SM0, lds_off)
    e("s_add_u32 s17, s%d, %d", goff_sgpr, gimm)
    e("buffer_load_dwordx4 v%d, s[4:7], s17 offen lds", VL16)
    return vm.issue()

class BG:
    def __init__(self, k=None, vm=None): self.q = []; self.last = None; self.k = k; self.vm = vm
    def add(self, fn, l0=False):
        if l0 and self.k.layer != 0: return
        self.q.append(fn)
    def emit(self, n=1):
        c = 0
        while c < n and self.q:
            self.last = self.q.pop(0)(); c += 1
        return c
    def flush(self): self.emit(len(self.q))

def q_dma(k, vm, bg, sreg, setup, n, lds0, goff0=0, l0=False, order=None):
    first = (order[0] if order is not None else 0)
    def mk(i):
        def f():
            if i == first and setup is not None: setup()
            return dma(k, vm, sreg, goff0 + i * 4096, lds0 + i * 4096)
        return f
    for i in (order if order is not None else range(n)): bg.add(mk(i), l0)

VTOUCH = 254
def touch(k, vm, base, nbytes_fn, nbytes, half):
    e = k.e
    per = nbytes // 128
    lines = (per + 127) // 128
    e("s_lshr_b32 s17, s2, 3"); e("s_and_b32 s17, s17, 31"); e("s_lshl_b32 s17, s17, 2"); e("s_add_u32 s17, s17, s%d", SW)
    e("s_mul_i32 s17, s17, %d", per)
    e("s_add_u32 s17, s17, 0x%x", base)
    if half:
        e("s_lshr_b32 s18, s%d, 3", SM); e("s_mul_i32 s18, s18, %d", nbytes); e("s_add_u32 s17, s17, s18")
    e("v_lshlrev_b32 v7, 7, v0")
    for i in range((lines + 63) // 64):
        if i: e("s_add_u32 s17, s17, 8192")
        rem = lines - 64 * i
        if rem < 64:
            e("s_mov_b64 exec, 0x%x", (1 << rem) - 1) if rem <= 32 else (e("s_mov_b32 exec_lo, -1"), e("s_mov_b32 exec_hi, 0x%x", (1 << (rem - 32)) - 1))
        e("buffer_load_dword v%d, v7, s[4:7], s17 offen", VTOUCH); vm.issue()
        if rem < 64: e("s_mov_b64 exec, -1")

def touch_wq(k, vm): touch(k, vm, WQ, None, 8 * WQ_J, True)
def touch_w1(k, vm): touch(k, vm, W1, None, 8 * 143360, True)
def touch_wo(k, vm): touch(k, vm, WO, None, 8 * 102400, False)
def touch_w2(k, vm): touch(k, vm, W2, None, 8 * 286720, False)

def signal(k, phase, s_idx):
    e = k.e
    lab = k.a.newlabel("sig")
    e("s_cmp_lg_u32 s%d, 0", SW); e("s_cbranch_scc1 %s", lab)
    e("s_lshl_b32 s17, s%d, 7", s_idx); e("s_add_u32 s17, s17, s%d", SCNT)
    e("s_add_u32 s17, s17, %d", phase * 2048)
    e("s_mov_b64 exec, 1")
    e("v_mov_b32 v7, 1")
    e("buffer_atomic_add v7, off, s[4:7], s17")
    e("s_mov_b64 exec, -1")
    k.a.label(lab)

def wait_cnt(k, phase, s_idx, prev_layer=False):
    e = k.e
    lab = k.a.newlabel("wbar"); lp = k.a.newlabel("poll"); ld = k.a.newlabel("pdone")
    e("s_cmp_lg_u32 s%d, 0", SW); e("s_cbranch_scc1 %s", lab)
    e("s_cmp_lg_u32 s%d, 0", SAB); e("s_cbranch_scc1 %s", lab)
    e("s_lshl_b32 s17, s%d, 7", s_idx); e("s_add_u32 s17, s17, s%d", SCNT)
    if prev_layer: e("s_sub_u32 s17, s17, %d", 5 * 2048 - phase * 2048)
    else: e("s_add_u32 s17, s17, %d", phase * 2048)
    e("s_mov_b32 s18, 0")
    e("s_mov_b64 exec, 1")
    k.a.label(lp)
    e("buffer_load_dword v7, off, s[4:7], s17 sc1")
    e("s_waitcnt vmcnt(0)")
    e("v_readfirstlane_b32 s19, v7")
    e("s_cmp_ge_u32 s19, 16"); e("s_cbranch_scc1 %s", ld)
    e("s_add_u32 s18, s18, 1")
    e("s_cmp_lt_u32 s18, 0x20000"); e("s_cbranch_scc1 %s", lp)
    e("s_mov_b32 s%d, 1", SAB)
    k.a.label(ld)
    e("s_mov_b64 exec, -1")
    k.a.label(lab)
    e("s_waitcnt vmcnt(0)")
    e("s_barrier")

def issue_stats(k, vm, st_sgpr, tt_sgpr, ntt, dst):
    e = k.e
    e("v_lshlrev_b32 v7, 6, v%d", VLO); e("v_lshl_add_u32 v7, v%d, 4, v7", VQD)
    e("s_lshl_b32 s17, s%d, 10", tt_sgpr); e("s_add_u32 s17, s17, s%d", st_sgpr)
    last = None
    for tt in range(ntt):
        e("buffer_load_dwordx4 v[%d:%d], v7, s[4:7], s17 offen offset:%d sc1", dst + 4 * tt, dst + 4 * tt + 3, tt * 1024); last = vm.issue()
    return last

def stats_finish(k, ST4, R, T, double):
    e = k.e
    e("v_add_f32 v%d, v%d, v%d", ST4, ST4, ST4 + 2)
    e("v_add_f32 v%d, v%d, v%d", ST4 + 1, ST4 + 1, ST4 + 3)
    e("v_permlane16_swap_b32 v%d, v%d", ST4, ST4 + 1)
    e("v_add_f32 v%d, v%d, v%d", ST4, ST4, ST4 + 1)
    e("v_mov_b32 v%d, v%d", ST4 + 1, ST4)
    e("v_permlane32_swap_b32 v%d, v%d", ST4, ST4 + 1)
    e("v_add_f32 v%d, v%d, v%d", ST4, ST4, ST4 + 1)
    e("v_mov_b32 v%d, v%d", ST4 + 1, ST4)
    e("v_permlane16_swap_b32 v%d, v%d", ST4, ST4 + 1)
    e("v_mul_f32 v%d, 0x%x, v%d", ST4, f32bits(1.0 / 640), ST4)
    e("v_mul_f32 v%d, 0x%x, v%d", R, f32bits(1.0 / 640), ST4 + 1)
    e("v_fma_f32 v%d, -v%d, v%d, v%d", R, ST4, ST4, R)
    e("v_max_f32 v%d, 0, v%d", R, R)
    if not double:
        e("v_add_f32 v%d, 0x%x, v%d", R, f32bits(1e-5), R)
        e("v_rsq_f32 v%d, v%d", R, R)
    else:
        e("v_add_f32 v%d, 0x%x, v%d", T, f32bits(1e-5), R)
        e("v_rcp_f32 v%d, v%d", T + 1, T)
        e("v_rsq_f32 v%d, v%d", T, T)
        e("v_mul_f32 v%d, v%d, v%d", R, R, T + 1)
        e("v_add_f32 v%d, 0x%x, v%d", R, f32bits(1e-5), R)
        e("v_rsq_f32 v%d, v%d", R, R)
        e("v_mul_f32 v%d, v%d, v%d", R, R, T)

def lds_gemm(k, nk, ntile, ntt, lds_off, breg, acc, afr, nbuf, wait_b=None, hook=None, bcls="a", acls="a", zero_first=True):
    e = k.e
    def rd(kk):
        for t in range(ntile):
            base, off = lds_addr(lds_off(kk, t))
            r = afr + ((kk % nbuf) * ntile + t) * 4
            e("ds_read_b128 %s[%d:%d], v%d offset:%d", acls, r, r + 3, base, off)
    def rd1(kk, t):
        base, off = lds_addr(lds_off(kk, t))
        r = afr + ((kk % nbuf) * ntile + t) * 4
        e("ds_read_b128 %s[%d:%d], v%d offset:%d", acls, r, r + 3, base, off)
    for kk in range(min(nbuf - 1, nk)): rd(kk)
    for kk in range(nk):
        ahead = min(nbuf - 2, nk - 1 - kk) * ntile
        if wait_b: wait_b(kk, min(ahead, 15))
        else: e("s_waitcnt lgkmcnt(%d)", min(ahead, 15))
        n = 0
        for t in range(ntile):
            for tt in range(ntt):
                c = acc(tt, t)
                ra = afr + ((kk % nbuf) * ntile + t) * 4
                rb = breg(kk, tt)
                src = "0" if (kk == 0 and zero_first) else "v[%d:%d]" % (c, c + 3)
                e("v_mfma_f32_16x16x32_bf16 v[%d:%d], %s[%d:%d], %s[%d:%d], %s", c, c + 3, acls, ra, ra + 3, bcls, rb, rb + 3, src)
                n += 1
                kn = kk + nbuf - 1
                if kn < nk and (n - 1) % ntt == 0 and (n - 1) // ntt < ntile:
                    rd1(kn, (n - 1) // ntt)
                if hook: hook(kk, n)

def gemm2(k, nk, ntile, ntt, lds_off, breg, acc, afr, nbuf, need_b=None, hook=None):
    a, e = k.a, k.e
    lm = {}; st = dict(n=0, ret=-1)
    def rd1(kn, t):
        base, off = lds_addr(lds_off(kn, t))
        r = afr + ((kn % nbuf) * ntile + t) * 4
        e("ds_read_b128 v[%d:%d], v%d offset:%d", r, r + 3, base, off)
        lm[(kn, t)] = st["n"]; st["n"] += 1
    for kk in range(min(nbuf - 1, nk)):
        for t in range(ntile): rd1(kk, t)
    for kk in range(nk):
        n = 0
        for t in range(ntile):
            idx = lm[(kk, t)]
            lg = None
            if idx > st["ret"]:
                lg = min(15, st["n"] - 1 - idx)
                st["ret"] = max(idx, st["n"] - 1 - lg)
            if t == 0 and need_b is not None:
                need_b(kk, (" lgkmcnt(%d)" % lg) if lg is not None else "")
            elif lg is not None:
                e("s_waitcnt lgkmcnt(%d)", lg)
            for tt in range(ntt):
                c = acc(tt, t)
                ra = afr + ((kk % nbuf) * ntile + t) * 4
                rb = breg(kk, tt)
                src = "0" if kk == 0 else "v[%d:%d]" % (c, c + 3)
                e("v_mfma_f32_16x16x32_bf16 v[%d:%d], v[%d:%d], v[%d:%d], %s", c, c + 3, ra, ra + 3, rb, rb + 3, src)
                n += 1
                kn = kk + nbuf - 1
                if kn < nk and n <= ntile: rd1(kn, n - 1)
                if hook: hook(kk, n)

class Feed:
    def __init__(self, vm, ring=None):
        self.q = []; self.done = {}; self.vm = vm; self.ring = ring; self.waited = None
    def add(self, step, fn): self.q.append((step, fn))
    def emit(self, kk, n=1):
        c = 0
        while c < n and self.q:
            step, fn = self.q[0]
            if self.ring is not None and step - self.ring >= max(kk, 0): break
            self.q.pop(0); self.done[step] = fn(); c += 1
        return c
    def need(self, a):
        def f(kk, extra):
            assert all(s > kk for s, _ in self.q), "step %d loads not issued" % kk
            self.vm.wait_for(a, self.done[kk], extra)
        return f

def tick(k, c):
    if k.bg is None: return
    k.acc += c
    if k.acc >= k.period:
        k.acc = 0; k.bg.emit(1)

def softmax_pm(k, A0, C, PK, EP, EN, TM):
    e = k.e
    MX, NM_, CM, CN = TM, TM + 1, TM + 2, TM + 4
    e("v_max3_f32 v%d, v%d, v%d, v%d", MX, A0, A0 + 1, A0 + 2)
    e("v_max3_f32 v%d, -v%d, -v%d, -v%d", NM_, A0, A0 + 1, A0 + 2)
    for i in (3, 5, 7):
        e("v_max3_f32 v%d, v%d, v%d, v%d", MX, MX, A0 + i, A0 + i + 1)
        e("v_max3_f32 v%d, v%d, -v%d, -v%d", NM_, NM_, A0 + i, A0 + i + 1)
    e("v_max_f32 v%d, v%d, v%d", MX, MX, A0 + 9)
    e("v_max_f32 v%d, v%d, -v%d", NM_, NM_, A0 + 9)
    tick(k, 48)
    e("v_permlane16_swap_b32 v%d, v%d", MX, NM_)
    e("v_max_f32 v%d, v%d, v%d", MX, MX, NM_)
    e("v_mov_b32 v%d, v%d", NM_, MX)
    e("v_permlane16_swap_b32 v%d, v%d", MX, NM_)
    e("v_mul_f32 v%d, v%d, v%d", CM, MX, C)
    e("v_mul_f32 v%d, v%d, v%d", CN, NM_, C)
    for i in range(5):
        e("v_pk_fma_f32 v[%d:%d], v[%d:%d], v[%d:%d], v[%d:%d] op_sel_hi:[1,0,0] neg_lo:[0,0,1] neg_hi:[0,0,1]",
          EP + 2 * i, EP + 2 * i + 1, A0 + 2 * i, A0 + 2 * i + 1, C, C + 1, CM, CM + 1)
        e("v_pk_fma_f32 v[%d:%d], v[%d:%d], v[%d:%d], v[%d:%d] op_sel_hi:[1,0,0] neg_lo:[1,0,1] neg_hi:[1,0,1]",
          EN + 2 * i, EN + 2 * i + 1, A0 + 2 * i, A0 + 2 * i + 1, C, C + 1, CN, CN + 1)
        tick(k, 16)
    for i in range(10):
        e("v_exp_f32 v%d, v%d", EP + i, EP + i)
        e("v_exp_f32 v%d, v%d", EN + i, EN + i)
        tick(k, 32)
    for E, Sx in ((EP, CM), (EN, CN)):
        e("v_pk_add_f32 v[%d:%d], v[%d:%d], v[%d:%d]", Sx, Sx + 1, E, E + 1, E + 2, E + 3)
    for E, Sx in ((EP, CM), (EN, CN)):
        e("v_pk_add_f32 v[%d:%d], v[%d:%d], v[%d:%d]", MX if False else Sx, Sx + 1, Sx, Sx + 1, E + 4, E + 5)
    for E, Sx in ((EP, CM), (EN, CN)):
        e("v_pk_add_f32 v[%d:%d], v[%d:%d], v[%d:%d]", Sx, Sx + 1, Sx, Sx + 1, E + 6, E + 7)
    for E, Sx in ((EP, CM), (EN, CN)):
        e("v_pk_add_f32 v[%d:%d], v[%d:%d], v[%d:%d]", Sx, Sx + 1, Sx, Sx + 1, E + 8, E + 9)
    tick(k, 64)
    e("v_add_f32 v%d, v%d, v%d", CM, CM, CM + 1)
    e("v_add_f32 v%d, v%d, v%d", CN, CN, CN + 1)
    e("v_permlane16_swap_b32 v%d, v%d", CM, CN)
    e("v_add_f32 v%d, v%d, v%d", CM, CM, CN)
    e("v_mov_b32 v%d, v%d", CN, CM)
    e("v_permlane16_swap_b32 v%d, v%d", CM, CN)
    e("v_rcp_f32 v%d, v%d", CM, CM)
    e("v_rcp_f32 v%d, v%d", CN, CN)
    for i in range(5):
        e("v_pk_mul_f32 v[%d:%d], v[%d:%d], v[%d:%d] op_sel_hi:[1,0]", EP + 2 * i, EP + 2 * i + 1, EP + 2 * i, EP + 2 * i + 1, CM, CM + 1)
        e("v_pk_mul_f32 v[%d:%d], v[%d:%d], v[%d:%d] op_sel_hi:[1,0]", EN + 2 * i, EN + 2 * i + 1, EN + 2 * i, EN + 2 * i + 1, CN, CN + 1)
        tick(k, 24)
    for i in range(5):
        e("v_cvt_pk_bf16_f32 v%d, v%d, v%d", PK + i, EP + 2 * i, EP + 2 * i + 1)
    tick(k, 20)
    for i in range(5):
        e("v_cvt_pk_bf16_f32 v%d, v%d, v%d", PK + 5 + i, EN + 2 * i, EN + 2 * i + 1)
    tick(k, 20)

def drain_and_signal(k, vm, last_store, phase, s_idx):
    vm.wait_for(k.a, last_store)
    k.e("s_barrier")
    signal(k, phase, s_idx)


def tile_offsets(k):
    e = k.e
    e("s_mul_i32 s25, s%d, 20480", STTW)
    e("s_mul_i32 s3, s%d, 5", SCB)
    for T in range(5):
        e("s_add_u32 s17, s3, %d", T)
        e("s_lshr_b32 s18, s17, 1"); e("s_lshl_b32 s18, s18, 10")
        e("s_and_b32 s17, s17, 1"); e("s_lshl_b32 s17, s17, 3")
        e("s_add_u32 s18, s18, s17"); e("s_add_u32 s%d, s18, s25", 28 + T)

def issue_resid(k, vm, xres, RES, BI, bias):
    e = k.e
    last = None
    for T in range(5):
        e("s_add_u32 s17, s%d, s%d", 28 + T, xres)
        e("buffer_load_dwordx2 v[%d:%d], v%d, s[4:7], s17 offen sc1", RES + 2 * T, RES + 2 * T + 1, VL16); last = vm.issue()
    if bias:
        e("v_lshlrev_b32 v7, 3, v%d", VQD)
        e("s_mul_i32 s17, s%d, 160", SCB)
        for T in range(5):
            e("buffer_load_dwordx2 v[%d:%d], v7, s[%d:%d], s17 offen offset:%d", BI + 2 * T, BI + 2 * T + 1, SRD_B2, SRD_B2 + 3, T * 32); last = vm.issue()
    return last

def finish_tile(k, vm, FS, RES, BI, bias, xout, stout, can_be_final, TMPV):
    a, e = k.a, k.e
    OUTP, S1, S2, T1, T2 = TMPV, TMPV + 10, TMPV + 11, TMPV + 12, TMPV + 13
    for T in range(5):
        for h in range(2):
            for src in ([RES] + ([BI] if bias else [])):
                e("v_lshlrev_b32 v%d, 16, v%d", T1, src + 2 * T + h)
                e("v_and_b32 v%d, 0xffff0000, v%d", T2, src + 2 * T + h)
                e("v_pk_add_f32 v[%d:%d], v[%d:%d], v[%d:%d]", FS + T * 4 + 2 * h, FS + T * 4 + 2 * h + 1, FS + T * 4 + 2 * h, FS + T * 4 + 2 * h + 1, T1, T2)
    for T in range(5):
        for h in range(2):
            e("v_cvt_pk_bf16_f32 v%d, v%d, v%d", OUTP + 2 * T + h, FS + T * 4 + 2 * h, FS + T * 4 + 2 * h + 1)
    if can_be_final:
        e("v_mul_u32_u24 v7, 1280, v%d", VLO)
        e("v_lshl_add_u32 v7, v%d, 3, v7", VQD)
        e("s_mul_i32 s17, s%d, %d", STTW, 16 * 1280); e("s_mul_i32 s18, s%d, 160", SCB); e("s_add_u32 s17, s17, s18")
        for T in range(5):
            e("buffer_store_dwordx2 v[%d:%d], v7, s[%d:%d], s17 offen offset:%d", OUTP + 2 * T, OUTP + 2 * T + 1, SRD_OUT, SRD_OUT + 3, T * 32)
        if DIAG: globals()['stamp_flush'](k)
        e("s_endpgm")
        return None
    odd = a.newlabel("odd"); st = a.newlabel("st")
    e("s_and_b32 s17, s%d, 1", SCB); e("s_cmp_eq_u32 s17, 1"); e("s_cbranch_scc1 %s", odd)
    for par in range(2):
        if par == 1: a.label(odd); a.fence()
        groups = [(0, 2), (2, 2), (4, 1)] if par == 0 else [(0, 1), (1, 2), (3, 2)]
        for (T, n) in groups:
            e("s_add_u32 s17, s%d, s%d", 28 + T, xout)
            if n == 2:
                e("buffer_store_dwordx4 v[%d:%d], v%d, s[4:7], s17 offen sc1", OUTP + 2 * T, OUTP + 2 * T + 3, VL16)
            else:
                e("buffer_store_dwordx2 v[%d:%d], v%d, s[4:7], s17 offen sc1", OUTP + 2 * T, OUTP + 2 * T + 1, VL16)
        if par == 0: e("s_branch %s", st)
    a.label(st); a.fence()
    for i in range(3): vm.issue()
    e("v_pk_add_f32 v[%d:%d], v[%d:%d], v[%d:%d]", T1, T2, FS, FS + 1, FS + 2, FS + 3)
    e("v_pk_mul_f32 v[%d:%d], v[%d:%d], v[%d:%d]", S1, S2, FS, FS + 1, FS, FS + 1)
    e("v_pk_fma_f32 v[%d:%d], v[%d:%d], v[%d:%d], v[%d:%d]", S1, S2, FS + 2, FS + 3, FS + 2, FS + 3, S1, S2)
    for i in range(4, 20, 2):
        e("v_pk_add_f32 v[%d:%d], v[%d:%d], v[%d:%d]", T1, T2, T1, T2, FS + i, FS + i + 1)
        e("v_pk_fma_f32 v[%d:%d], v[%d:%d], v[%d:%d], v[%d:%d]", S1, S2, FS + i, FS + i + 1, FS + i, FS + i + 1, S1, S2)
    e("v_add_f32 v%d, v%d, v%d", S2, S1, S2)
    e("v_add_f32 v%d, v%d, v%d", S1, T1, T2)
    e("v_permlane16_swap_b32 v%d, v%d", S1, S2)
    e("v_add_f32 v%d, v%d, v%d", S1, S1, S2)
    e("v_mov_b32 v%d, v%d", S2, S1)
    e("v_permlane32_swap_b32 v%d, v%d", S1, S2)
    e("v_add_f32 v%d, v%d, v%d", S1, S1, S2)
    e("v_mov_b32 v%d, v%d", S2, S1)
    e("v_permlane16_swap_b32 v%d, v%d", S1, S2)
    e("v_lshlrev_b32 v7, 6, v%d", VLO)
    e("s_lshl_b32 s17, s%d, 10", STTW); e("s_lshl_b32 s18, s%d, 3", SCB); e("s_add_u32 s17, s17, s18"); e("s_add_u32 s17, s17, s%d", stout)
    e("s_mov_b64 exec, 0xffff")
    e("buffer_store_dwordx2 v[%d:%d], v7, s[4:7], s17 offen sc1", S1, S2); last = vm.issue()
    e("s_mov_b64 exec, -1")
    return last
```

```python
from main_head import *
P = dict(DP3=12, DEP4=6, NT=0, U1=8, U2=16, U3=8, U4=4, D1=12, D2=12, D3=25, D4=12, TCH=1, WB_=10, WE=10, WO_=8, WJ=16, WM=10)
for kv in os.environ.get("TUNE", "").split(","):
    if kv: P[kv.split("=")[0]] = int(kv.split("=")[1])
NT = " nt" if P["NT"] else ""
DIAG2 = DIAG and int(os.environ.get("DIAG", "0")) >= 2

def setup_wq(k, extra=0):
    e = k.e
    e("s_mul_i32 s33, s%d, %d", SM, WQ_J); e("s_add_u32 s33, s33, s%d", SM0); e("s_add_u32 s33, s33, 0x%x", WQ + extra)

SW2 = 62
W2X = 220
def w2_reg(n):
    return ("a", 4 * n) if n < 64 else ("v", W2X + 4 * (n - 64))
def w2_load(k, vm, n):
    i, T = n // 5, n % 5
    c, r = w2_reg(n)
    k.e("s_add_u32 s17, s%d, %d", SW2, i * 4 * 5120 + (T // 4) * 4096)
    k.e("buffer_load_dwordx4 %s[%d:%d], v%d, s[4:7], s17 offen offset:%d%s", c, r, r + 3, VL16, (T % 4) * 1024, NT)
    return vm.issue()
class W2Q:
    def __init__(self): self.n = 0
    def add(self, k, vm, bg, cnt):
        if k.layer != 0: return
        for _ in range(cnt):
            if self.n >= 64: return
            n = self.n; self.n += 1
            bg.add(lambda n=n: w2_load(k, vm, n), True)

VDUM = 253
def touch_items(k, vm, bg, base, blk, half, l0=False):
    if not P["TCH"]: return
    e = k.e
    per = 8 * blk // 128
    n = (per + 2047) // 2048
    def mk(i):
        def f():
            e("s_lshr_b32 s17, s2, 3"); e("s_and_b32 s17, s17, 31"); e("s_lshl_b32 s17, s17, 2"); e("s_add_u32 s17, s17, s%d", SW)
            e("s_mul_i32 s17, s17, %d", per)
            e("s_add_u32 s17, s17, 0x%x", base + i * 2048)
            if half:
                e("s_lshr_b32 s18, s%d, 3", SM); e("s_mul_i32 s18, s18, %d", 8 * blk); e("s_add_u32 s17, s17, s18")
            e("v_lshlrev_b32 v7, 7, v%d", VLO)
            e("buffer_load_dword v%d, v7, s[4:7], s17 offen", VDUM)
            return vm.issue()
        return f
    for i in range(n): bg.add(mk(i), l0)

def phase1(k):
    a, e = k.a, k.e
    w2q = k.w2q
    vm = VM()
    X = 88
    ACCA = 8
    AFR = 48
    STR = 248
    EP, EN, TM = 48, 58, 68
    PK = 48
    VP = 74
    VPH, VPV = 80, 81
    stamp(k, 0)
    if k.layer: wait_cnt(k, 4, SRB, prev_layer=True)
    stamp(k, 1)
    SX0, SX1_ = 21, 22
    e("s_mul_i32 s%d, s%d, 20480", SX0, STT0); e("s_add_u32 s%d, s%d, s%d", SX0, SX0, SXIN)
    e("s_add_u32 s%d, s%d, 20480", SX1_, SX0)
    feed = Feed(vm)
    def xload(kk, tt):
        def f():
            sx = (SX0, SX1_)[tt]
            if kk % 4 == 0 and kk:
                e("s_add_u32 s%d, s%d, 4096", sx, sx)
            b = X + (kk * 2 + tt) * 4
            e("buffer_load_dwordx4 v[%d:%d], v%d, s[4:7], s%d offen offset:%d sc1", b, b + 3, VL16, sx, (kk % 4) * 1024)
            return vm.issue()
        return f
    for kk in range(20):
        for tt in range(2): feed.add(kk, xload(kk, tt))
    U = P["U1"]
    feed.emit(-1, 4)
    issue_stats(k, vm, SSTIN, STT0, 2, STR)
    feed.emit(-1, 2 * U - 4)
    bg = BG(k, vm)
    wb_last = None
    if k.layer == 0:
        e("s_waitcnt vmcnt(%d)", 2 * U + 2)
        e("s_barrier")
        q_dma(k, vm, bg, 33, lambda: setup_wq(k, WQ_B), 15, LDS_B)
        wbm = {}
        bg.add(lambda: wbm.setdefault("i", bg.last))
    def hook(kk, n):
        if n in (3, 8):
            if not feed.emit(kk, 1): bg.emit(1)
        if DIAG2 and n == 1 and kk in (0, 4, 9, 14): stamp(k, 23 + (0, 4, 9, 14).index(kk))
    gemm2(k, 20, 5, 2, lambda kk, t: (kk * 5 + t) * 1024, lambda kk, tt: X + (kk * 2 + tt) * 4,
          lambda tt, t: ACCA + tt * 20 + t * 4, AFR, 2, feed.need(a), hook)
    bg.flush()
    if k.layer == 0: wb_last = wbm["i"]
    stamp(k, 2)
    e("s_barrier")
    e("v_lshrrev_b32 v%d, 1, v%d", TM, VQD)
    e("v_and_b32 v%d, 1, v%d", TM + 1, VQD)
    e("s_lshl_b32 s17, s%d, 5", SW)
    e("v_lshl_add_u32 v%d, v%d, 7, v%d", TM, TM, VLO)
    e("v_add_u32 v%d, s17, v%d", TM, TM)
    e("v_mul_u32_u24 v%d, 160, v%d", TM, TM)
    e("v_mul_u32_u24 v%d, 48, v%d", VPH, TM + 1); e("v_add_u32 v%d, v%d, v%d", VPH, VPH, TM)
    e("v_mul_u32_u24 v%d, 24, v%d", VPV, TM + 1); e("v_add_u32 v%d, v%d, v%d", VPV, VPV, TM)
    e("v_add_u32 v%d, 96, v%d", VPV, VPV)
    e("v_mov_b32 v%d, 0x3f80", VP + 5)
    Rr = lambda tt: STR + 4 * tt + 2
    Cc = lambda tt: STR + 4 * tt
    for tt in range(2):
        stats_finish(k, STR + 4 * tt, Rr(tt), TM, False)
        e("v_mul_f32 v%d, 0x%x, v%d", Cc(tt), f32bits(LOG2E), Rr(tt))
    touch_items(k, vm, bg, WO, 102400, False)
    k.bg = bg; k.period = 400; k.acc = 400
    for tt in range(2):
        A0 = ACCA + tt * 20
        softmax_pm(k, A0, Cc(tt), PK, EP, EN, TM)
        e("v_mov_b32 v%d, 0", PK + 10); e("v_mov_b32 v%d, 0", PK + 11)
        R = Rr(tt)
        for i in range(5):
            e("v_pk_mul_f32 v[%d:%d], v[%d:%d], v[%d:%d] op_sel_hi:[1,0]", A0 + 10 + 2 * i, A0 + 11 + 2 * i, A0 + 10 + 2 * i, A0 + 11 + 2 * i, R, R + 1)
        for i in range(5):
            e("v_cvt_pk_bf16_f32 v%d, v%d, v%d", VP + i, A0 + 10 + 2 * i, A0 + 11 + 2 * i)
        for g in range(3):
            e("ds_write_b128 v%d, v[%d:%d] offset:%d", VPH, PK + 4 * g, PK + 4 * g + 3, tt * 16 * 160 + g * 16)
        for g in range(3):
            e("ds_write_b64 v%d, v[%d:%d] offset:%d", VPV, VP + 2 * g, VP + 2 * g + 1, tt * 16 * 160 + g * 8)
    k.bg = None
    bg.flush()
    VTA, VTB = 84, 85
    T0, T1 = TM, TM + 1
    e("v_lshrrev_b32 v%d, 2, v%d", T0, VLO)
    e("v_lshl_add_u32 v%d, v%d, 2, v%d", T0, VQD, T0)
    e("s_lshr_b32 s17, s%d, 1", SW); e("s_lshl_b32 s17, s17, 7")
    e("v_add_u32 v%d, s17, v%d", T0, T0)
    e("v_mul_u32_u24 v%d, 160, v%d", VTB, T0)
    e("v_and_b32 v%d, 3, v%d", T1, VLO)
    e("v_lshl_add_u32 v%d, v%d, 3, v%d", VTB, T1, VTB)
    e("s_and_b32 s19, s%d, 1", SW)
    e("s_lshl_b32 s17, s19, 5"); e("s_add_u32 s17, s17, 96")
    e("v_add_u32 v%d, s17, v%d", VTA, VTB)
    VA0, VA3 = 86, 87
    e("v_mov_b32 v%d, 0x%x", T1, OOB)
    e("v_lshlrev_b32 v%d, 2, v0", VA0)
    e("s_cmp_eq_u32 s19, 1"); e("s_cselect_b32 s18, 2, 4")
    e("v_cmp_gt_u32 vcc, s18, v%d", VQD)
    e("v_cndmask_b32 v%d, v%d, v%d, vcc", VA0, T1, VA0)
    e("s_sub_u32 s18, 2, s19")
    e("v_cmp_ne_u32 vcc, s18, v%d", VQD)
    e("v_cndmask_b32 v%d, v%d, v%d, vcc", VA3, T1, VA0)
    e("s_lshl_b32 s17, s%d, 1", SM); e("s_lshr_b32 s3, s%d, 1", SW); e("s_add_u32 s17, s17, s3")
    e("s_mul_i32 s17, s17, %d", KV_HEAD); e("s_mul_i32 s3, s19, 3072"); e("s_add_u32 s17, s17, s3"); e("s_add_u32 s23, s17, s%d", SKV)
    e("s_waitcnt lgkmcnt(0)")
    e("s_barrier")
    stamp(k, 3)
    KC = 8
    TA = 20
    TB = 36
    for ks in range(4):
        for hf in range(2):
            e("ds_read_b64_tr_b16 v[%d:%d], v%d offset:%d", TA + ks * 4 + hf * 2, TA + ks * 4 + hf * 2 + 1, VTA, (32 * ks + 16 * hf) * 160)
        for b in range(3):
            for hf in range(2):
                r = TB + (ks * 3 + b) * 4 + hf * 2
                e("ds_read_b64_tr_b16 v[%d:%d], v%d offset:%d", r, r + 1, VTB, (32 * ks + 16 * hf) * 160 + 32 * b)
    for ks in range(4):
        e("s_waitcnt lgkmcnt(%d)", min(15, 8 * (3 - ks)))
        for b in range(3):
            r = TB + (ks * 3 + b) * 4
            c = KC + 4 * b
            e("v_mfma_f32_16x16x32_bf16 v[%d:%d], v[%d:%d], v[%d:%d], %s", c, c + 3, TA + 4 * ks, TA + 4 * ks + 3, r, r + 3, "0" if ks == 0 else "v[%d:%d]" % (c, c + 3))
    at_last = None
    for b in range(3):
        for r in range(4):
            e("buffer_atomic_add_f32 v%d, v%d, s[4:7], s23 offen offset:%d", KC + 4 * b + r, VA3 if r == 3 else VA0, b * 1024 + r * 256); at_last = vm.issue()
    if k.layer == 0:
        vm.wait_for(a, wb_last)
        e("s_barrier")
    stamp(k, 4)
    ACCB = 20
    AFRB = 44
    bgt = BG(k, vm)
    touch_items(k, vm, bgt, W1, 143360, True)
    w2q.add(k, vm, bg, P["WB_"])
    def hookB(kk, n):
        if n == 3 and kk % 2 == 1: bg.emit(1)
        if n == 3 and kk in (0, 6, 12, 18): bgt.emit(1)
    gemm2(k, 20, 3, 2, lambda kk, t: LDS_B + (kk * 3 + t) * 1024, lambda kk, tt: X + (kk * 2 + tt) * 4,
          lambda tt, t: ACCB + tt * 12 + t * 4, AFRB, 3, None, hookB)
    bg.flush()
    stamp(k, 5)
    vm.wait_for(a, at_last)
    e("s_barrier")
    signal(k, 0, SM)
    EP, EN, TM = 88, 98, 108
    T0, T1 = TM, TM + 1
    PQ = 136
    for i in (PQ + 10, PQ + 11, PQ + 22, PQ + 23): e("v_mov_b32 v%d, 0", i)
    bgt.flush()
    w2q.add(k, vm, bg, P["WE"])
    k.bg = bg; k.period = 128; k.acc = 0
    for tt in range(2):
        softmax_pm(k, ACCB + tt * 12, Cc(tt), PQ + 12 * tt, EP, EN, TM)
    k.bg = None
    bg.flush()
    VK0 = 160
    e("v_lshrrev_b32 v%d, 2, v%d", T0, VLO)
    e("v_and_b32 v%d, 3, v%d", T1, VLO)
    e("v_lshrrev_b32 v%d, 1, v%d", TM + 2, T0)
    e("v_mul_u32_u24 v%d, %d, v%d", TM + 4, KV_HEAD, TM + 2)
    e("v_lshl_add_u32 v%d, v%d, 8, v%d", TM + 4, T1, TM + 4)
    e("v_lshrrev_b32 v%d, 1, v%d", TM + 3, VQD)
    e("v_mov_b32 v%d, 0x%x", T1, OOB)
    e("v_cmp_eq_u32 vcc, v%d, v%d", TM + 2, TM + 3)
    e("v_cndmask_b32 v%d, v%d, v%d, vcc", TM + 4, T1, TM + 4)
    e("v_and_b32 v%d, 1, v%d", TM + 2, T0)
    e("v_and_b32 v%d, 1, v%d", TM + 3, VQD)
    e("s_mul_i32 s20, s%d, %d", SM, 2 * KV_HEAD); e("s_add_u32 s20, s20, s%d", SKV)
    OSC = LDS_B + 50 * 1024
    for i in range(3):
        e("s_add_u32 s3, s%d, %d", SW, 4 * i); e("s_min_u32 s3, s3, 8")
        e("s_mul_i32 s35, s3, 43"); e("s_lshr_b32 s35, s35, 7")
        e("s_mul_i32 s27, s35, 3"); e("s_sub_u32 s27, s3, s27")
        e("s_lshl_b32 s%d, s3, 10", 24 + i); e("s_add_u32 s%d, s%d, %d", 24 + i, 24 + i, OSC)
        e("s_lshl_b32 s28, s35, 6")
        e("s_add_u32 s35, s35, 3"); e("s_lshr_b32 s29, s35, 2"); e("s_mul_i32 s29, s29, 3072"); e("s_and_b32 s35, s35, 3"); e("s_lshl_b32 s35, s35, 6"); e("s_add_u32 s29, s29, s35")
        e("s_sub_u32 s29, s29, s28")
        e("v_mul_u32_u24 v%d, s29, v%d", VK0 + i, TM + 2)
        e("v_add3_u32 v%d, v%d, s28, v%d", VK0 + i, VK0 + i, TM + 4)
        e("s_lshr_b32 s28, s27, 1"); e("s_lshl_b32 s28, s28, 10"); e("s_and_b32 s35, s27, 1"); e("s_lshl_b32 s35, s35, 5"); e("s_add_u32 s28, s28, s35")
        e("s_add_u32 s27, s27, 3"); e("s_lshr_b32 s29, s27, 1"); e("s_lshl_b32 s29, s29, 10"); e("s_and_b32 s35, s27, 1"); e("s_lshl_b32 s35, s35, 5"); e("s_add_u32 s29, s29, s35")
        e("s_sub_u32 s29, s29, s28")
        e("v_mul_u32_u24 v%d, s29, v%d", TM + 5, TM + 3)
        e("v_add3_u32 v%d, v%d, s28, v%d", TM + 5, TM + 5, VK0 + i)
        e("v_mov_b32 v%d, v%d", VK0 + i, TM + 5)
    e("s_mov_b32 s93, s20")
    e("s_mul_i32 s20, s%d, 20480", STT0); e("s_add_u32 s20, s20, s%d", SO)
    e("s_lshl_b32 s3, s%d, 10", SM); e("s_add_u32 s21, s20, s3")
    e("s_lshr_b32 s3, s%d, 2", SM); e("s_lshl_b32 s3, s3, 10"); e("s_and_b32 s27, s%d, 3", SM); e("s_lshl_b32 s27, s27, 2")
    e("s_add_u32 s3, s3, s27"); e("s_add_u32 s22, s20, s3"); e("s_add_u32 s22, s22, 16384")
    stamp(k, 6)
    wait_cnt(k, 0, SM)
    stamp(k, 7)
    vm = VM(); bg = BG(k, vm)
    KR = 168
    for i in range(3):
        e("buffer_load_dwordx4 v[%d:%d], v%d, s[4:7], s93 offen sc1", KR + 8 * i, KR + 8 * i + 3, VK0 + i); vm.issue()
        e("buffer_load_dwordx4 v[%d:%d], v%d, s[4:7], s93 offen offset:16 sc1", KR + 8 * i + 4, KR + 8 * i + 7, VK0 + i); vm.issue()
    w2q.add(k, vm, bg, P["WO_"])
    bg.flush()
    for i in range(3):
        e("v_add_u32 v7, s%d, v%d", 24 + i, VL16)
        vm.wait_for(a, 2 * i + 1)
        for q in range(4):
            e("v_cvt_pk_bf16_f32 v%d, v%d, v%d", KR + 8 * i + q, KR + 8 * i + 2 * q, KR + 8 * i + 2 * q + 1)
        e("ds_write_b128 v7, v[%d:%d]", KR + 8 * i, KR + 8 * i + 3)
    e("s_waitcnt lgkmcnt(0)")
    e("s_barrier")
    KA_ = 192
    for f in (0, 3, 6, 1, 4, 7, 2, 5, 8):
        base, off = lds_addr(OSC + f * 1024)
        e("ds_read_b128 v[%d:%d], v%d offset:%d", KA_ + 4 * f, KA_ + 4 * f + 3, base, off)
    OC_ = 8
    for s in range(3):
        e("s_waitcnt lgkmcnt(%d)", 6 - 3 * s)
        for tt in range(2):
            for t in range(3):
                c = OC_ + tt * 12 + t * 4
                ka = KA_ + (t * 3 + s) * 4
                pb = PQ + 12 * tt + 4 * s
                e("v_mfma_f32_16x16x32_bf16 v[%d:%d], v[%d:%d], v[%d:%d], %s", c, c + 3, ka, ka + 3, pb, pb + 3, "0" if s == 0 else "v[%d:%d]" % (c, c + 3))
    OP = 32
    last = None
    for tt in range(2):
        c = OC_ + tt * 12
        e("v_add_f32 v%d, 0x%x, v%d", TM, f32bits(1e-6), c + 10)
        e("v_rcp_f32 v%d, v%d", TM, TM)
        for i in range(5):
            e("v_pk_mul_f32 v[%d:%d], v[%d:%d], v[%d:%d] op_sel_hi:[1,0]", c + 2 * i, c + 2 * i + 1, c + 2 * i, c + 2 * i + 1, TM, TM + 1)
        for i in range(5):
            e("v_cvt_pk_bf16_f32 v%d, v%d, v%d", OP + 6 * tt + i, c + 2 * i, c + 2 * i + 1)
        if tt:
            e("s_add_u32 s21, s21, 20480"); e("s_add_u32 s22, s22, 20480")
        e("buffer_store_dwordx4 v[%d:%d], v%d, s[4:7], s21 offen sc1", OP + 6 * tt, OP + 6 * tt + 3, VL16); vm.issue()
        e("buffer_store_dword v%d, v%d, s[4:7], s22 offen sc1", OP + 6 * tt + 4, VL16); last = vm.issue()
    stamp(k, 8)
    def su_wo():
        e("s_mul_i32 s33, s%d, %d", SCB, 100 * 1024); e("s_add_u32 s33, s33, s%d", SM0); e("s_add_u32 s33, s33, 0x%x", WO)
    q_dma(k, vm, bg, 33, su_wo, 25, 0)
    w2q.add(k, vm, bg, P["WJ"])
    bg.emit(P["D1"])
    tile_offsets(k)
    drain_and_signal(k, vm, last, 1, SRB)
    bg.flush()
    stamp(k, 9)

def phase2(k):
    a, e = k.a, k.e
    RES = 8
    FS = 20
    OF_ = 40
    TMPV = 120
    AFR = 136
    vm = VM()
    e("s_mul_i32 s20, s%d, 20480", STTW); e("s_add_u32 s20, s20, s%d", SO)
    res_last = issue_resid(k, vm, SXIN, RES, None, False)
    wait_cnt(k, 1, SRB)
    stamp(k, 10)
    vm = VM()
    feed = Feed(vm)
    def oload(kk):
        def f():
            if kk and kk % 4 == 0: e("s_add_u32 s20, s20, 4096")
            e("buffer_load_dwordx4 v[%d:%d], v%d, s[4:7], s20 offen offset:%d sc1", OF_ + 4 * kk, OF_ + 4 * kk + 3, VL16, (kk % 4) * 1024)
            return vm.issue()
        return f
    for kk in range(20): feed.add(kk, oload(kk))
    feed.emit(-1, P["U2"])
    def hook(kk, n):
        if n == 2: feed.emit(kk, 1)
    gemm2(k, 20, 5, 1, lambda kk, t: (kk * 5 + t) * 1024, lambda kk, tt: OF_ + 4 * kk, lambda tt, t: FS + 4 * t, AFR, 3, feed.need(a), hook)
    stamp(k, 11)
    last = finish_tile(k, vm, FS, RES, None, False, SX1, SST1, False, TMPV)
    stamp(k, 12)
    bg = BG(k, vm)
    def su_w1():
        e("s_mul_i32 s34, s%d, 143360", SM); e("s_add_u32 s34, s34, s%d", SM0); e("s_add_u32 s34, s34, 0x%x", W1)
    q_dma(k, vm, bg, 34, su_w1, 12, LDS_B)
    def p48():
        e("s_mov_b32 m0, %d", LDS_B + 48 * 1024)
        e("s_sub_u32 s17, s34, s%d", SM0); e("s_add_u32 s17, s17, %d", 48 * 1024)
        e("buffer_load_dwordx4 v%d, s[4:7], s17 offen lds", VL16); return vm.issue()
    bg.add(p48)
    q_dma(k, vm, bg, 34, None, 23, 0, goff0=49 * 1024)
    k.w2q.add(k, vm, bg, P["WM"])
    assert P["D2"] <= 13
    bg.emit(P["D2"])
    drain_and_signal(k, vm, last, 2, SRB)
    bg.flush()
    stamp(k, 13)

def w1_lds(kk, t):
    return LDS_B + (kk * 7 + t) * 1024 if kk < 7 else ((kk - 7) * 7 + t) * 1024

def phase3(k):
    a, e = k.a, k.e
    w2q = k.w2q
    ACC = 8
    STR = 64
    BIR = 72
    AFR = 88
    XR = 144
    DP = P["DP3"]
    assert XR + DP * 8 <= 248
    BF = 88
    RS = 116
    TM = 120
    X = 128
    PKD = 136
    KC0, KC1 = 164, 166
    VOB = 168
    STBASE = 26
    vm = VM()
    e("s_and_b32 s17, s%d, 7", SM); e("s_mul_i32 s%d, s17, 7", STBASE)
    e("s_cmp_eq_u32 s17, 7"); e("s_cselect_b32 s%d, 48, s%d", STBASE, STBASE)
    e("s_lshr_b32 s3, s%d, 3", SM); e("s_mul_i32 s3, s3, 54"); e("s_add_u32 s%d, s%d, s3", STBASE, STBASE)
    e("v_lshlrev_b32 v7, 3, v%d", VQD)
    e("s_lshl_b32 s17, s%d, 5", STBASE)
    for t in range(7):
        e("buffer_load_dwordx2 v[%d:%d], v7, s[%d:%d], s17 offen offset:%d", BIR + 2 * t, BIR + 2 * t + 1, SRD_B1, SRD_B1 + 3, t * 32)
    SX0, SX1_ = 21, 22
    e("s_mul_i32 s%d, s%d, 20480", SX0, STT0); e("s_add_u32 s%d, s%d, s%d", SX0, SX0, SX1)
    e("s_add_u32 s%d, s%d, 20480", SX1_, SX0)
    wait_cnt(k, 2, SRB)
    stamp(k, 14)
    vm = VM()
    xreg = lambda kk, tt: XR + (kk % DP) * 8 + tt * 4
    feed = Feed(vm, ring=DP)
    def xload(kk, tt):
        def f():
            sx = (SX0, SX1_)[tt]
            if kk % 4 == 0 and kk:
                e("s_add_u32 s%d, s%d, 4096", sx, sx)
            b = xreg(kk, tt)
            e("buffer_load_dwordx4 v[%d:%d], v%d, s[4:7], s%d offen offset:%d sc1", b, b + 3, VL16, sx, (kk % 4) * 1024)
            return vm.issue()
        return f
    for kk in range(20):
        for tt in range(2): feed.add(kk, xload(kk, tt))
    feed.emit(-1, 4)
    issue_stats(k, vm, SST1, STT0, 2, STR)
    feed.emit(-1, 2 * P["U3"] - 4)
    bg = BG(k, vm)
    w2q.add(k, vm, bg, 64)
    bgt = BG(k, vm)
    touch_items(k, vm, bgt, WQ, WQ_J, True, l0=True)
    def hook(kk, n):
        if n in (4, 11):
            if not feed.emit(kk, 1) and not feed.q: bg.emit(1)
        if n == 7 and kk in (13, 16, 19): bgt.emit(1)
        if DIAG2 and n == 1 and kk in (0, 4, 9, 14): stamp(k, 27 + (0, 4, 9, 14).index(kk))
    gemm2(k, 20, 7, 2, w1_lds, xreg, lambda tt, t: ACC + tt * 28 + t * 4, AFR, 2, feed.need(a), hook)
    bg.flush()
    stamp(k, 15)
    for t in range(7):
        for h in range(2):
            e("v_lshlrev_b32 v%d, 16, v%d", BF + 4 * t + 2 * h, BIR + 2 * t + h)
            e("v_and_b32 v%d, 0xffff0000, v%d", BF + 4 * t + 2 * h + 1, BIR + 2 * t + h)
    K0 = -2.0 * LOG2E * 0.7978845608028654
    K1 = K0 * 0.044715
    e("v_mov_b32 v%d, 0x%x", KC0, f32bits(K0)); e("v_mov_b32 v%d, 0x%x", KC1, f32bits(K1))
    for tt in range(2): stats_finish(k, STR + 4 * tt, RS + 2 * tt, TM, True)
    bgt.flush()
    SHh = 21
    last = None
    e("s_and_b32 s17, s%d, 7", SM); e("s_cmp_ge_u32 s17, 6"); e("s_cselect_b32 s17, 0x%x, 0", OOB); e("v_add_u32 v%d, s17, v%d", VOB, VL16)
    odd = a.newlabel("hodd"); fin = a.newlabel("hfin")
    e("s_bitcmp1_b32 s%d, 0", STBASE); e("s_cbranch_scc1 %s", odd)
    for par in range(2):
        if par: a.label(odd); a.fence()
        for tt in range(2):
            A0 = ACC + tt * 28
            R = RS + 2 * tt
            Pk = PKD + 14 * tt
            e("s_add_u32 s%d, s%d, %d", SHh, STT0, tt); e("s_mul_i32 s%d, s%d, %d", SHh, SHh, 54 * 1024); e("s_add_u32 s%d, s%d, s%d", SHh, SHh, SH)
            e("s_lshr_b32 s17, s%d, 1", STBASE); e("s_lshl_b32 s17, s17, 10"); e("s_add_u32 s%d, s%d, s17", SHh, SHh)
            for t in range(7):
                x0 = A0 + 4 * t
                for h in range(2):
                    x = x0 + 2 * h
                    e("v_pk_fma_f32 v[%d:%d], v[%d:%d], v[%d:%d], v[%d:%d] op_sel_hi:[1,0,1]", x, x + 1, x, x + 1, R, R + 1, BF + 4 * t + 2 * h, BF + 4 * t + 2 * h + 1)
                for h in range(2):
                    x = x0 + 2 * h
                    e("v_pk_mul_f32 v[%d:%d], v[%d:%d], v[%d:%d]", X + 2 * h, X + 2 * h + 1, x, x + 1, x, x + 1)
                for h in range(2):
                    e("v_pk_fma_f32 v[%d:%d], v[%d:%d], v[%d:%d], v[%d:%d] op_sel_hi:[1,0,0]", X + 2 * h, X + 2 * h + 1, X + 2 * h, X + 2 * h + 1, KC1, KC1 + 1, KC0, KC0 + 1)
                for h in range(2):
                    x = x0 + 2 * h
                    e("v_pk_mul_f32 v[%d:%d], v[%d:%d], v[%d:%d]", X + 2 * h, X + 2 * h + 1, X + 2 * h, X + 2 * h + 1, x, x + 1)
                for q in range(4): e("v_exp_f32 v%d, v%d", X + q, X + q)
                for h in range(2):
                    e("v_pk_add_f32 v[%d:%d], v[%d:%d], 1.0 op_sel_hi:[1,0]", X + 2 * h, X + 2 * h + 1, X + 2 * h, X + 2 * h + 1)
                for q in range(4): e("v_rcp_f32 v%d, v%d", X + q, X + q)
                for h in range(2):
                    x = x0 + 2 * h
                    e("v_pk_mul_f32 v[%d:%d], v[%d:%d], v[%d:%d]", X + 2 * h, X + 2 * h + 1, X + 2 * h, X + 2 * h + 1, x, x + 1)
                e("v_cvt_pk_bf16_f32 v%d, v%d, v%d", Pk + 2 * t, X, X + 1)
                e("v_cvt_pk_bf16_f32 v%d, v%d, v%d", Pk + 2 * t + 1, X + 2, X + 3)
                if (t % 2) != par and t > 0:
                    e("buffer_store_dwordx4 v[%d:%d], v%d, s[4:7], s%d offen offset:%d sc1", Pk + 2 * t - 2, Pk + 2 * t + 1, VL16, SHh, (t // 2) * 1024)
                elif par == 0 and t == 6:
                    e("buffer_store_dwordx2 v[%d:%d], v%d, s[4:7], s%d offen offset:%d sc1", Pk + 12, Pk + 13, VOB, SHh, 3 * 1024)
                elif par == 1 and t == 0:
                    e("buffer_store_dwordx2 v[%d:%d], v%d, s[4:7], s%d offen offset:8 sc1", Pk, Pk + 1, VL16, SHh)
        if par == 0: e("s_branch %s", fin)
    a.label(fin); a.fence()
    for i in range(8): last = vm.issue()
    stamp(k, 16)
    bg = BG(k, vm)
    if k.layer == 0:
        e("s_barrier")
        q_dma(k, vm, bg, 33, lambda: setup_wq(k), 25, 0)
        bg.emit(P["D3"])
    tile_offsets(k)
    drain_and_signal(k, vm, last, 3, SRB)
    bg.flush()
    stamp(k, 17)

def phase4(k):
    a, e = k.a, k.e
    ACC = 8
    DEP = P["DEP4"]
    HR = 88
    RES = HR + DEP * 16
    BI = RES + 10
    TMPV = BI + 10
    assert TMPV + 14 <= W2X
    RD = 88
    NI = 14
    vm = VM()
    for i in range(4):
        e("s_add_u32 s17, s%d, %d", SW, i); e("s_and_b32 s17, s17, 3")
        e("s_lshl_b32 s18, s%d, 2", STB); e("s_add_u32 s17, s17, s18")
        e("s_mul_i32 s17, s17, %d", 54 * 1024); e("s_add_u32 s17, s17, s%d", SH)
        e("s_add_u32 s%d, s17, s%d", 20 + i, SM0)
    e("s_cmp_lt_u32 s%d, 2", SW); e("s_cselect_b32 s24, 0, 4096")
    for n in range(64, 70): w2_load(k, vm, n)
    issue_resid(k, vm, SX1, RES, BI, True)
    wait_cnt(k, 3, SRB)
    stamp(k, 18)
    vm = VM()
    feed = Feed(vm, ring=DEP)
    def hload(i, sl):
        def f():
            b = HR + ((i % DEP) * 4 + sl) * 4
            e("s_add_u32 s17, s%d, %d", 20 + sl, i * 4096)
            if i == NI - 1: e("s_sub_u32 s17, s17, s24")
            e("buffer_load_dwordx4 v[%d:%d], v%d, s[4:7], s17 offen sc1", b, b + 3, VL16)
            return vm.issue()
        return f
    for i in range(NI):
        for sl in range(4): feed.add(i, hload(i, sl))
    feed.emit(-1, 4 * P["U4"])
    need = feed.need(a)
    for i in range(NI):
        need(i, "")
        n = 0
        for T in range(5):
            for sl in range(4):
                c = ACC + (sl * 5 + T) * 4
                wc, w = w2_reg(i * 5 + T)
                h = HR + ((i % DEP) * 4 + sl) * 4
                e("v_mfma_f32_16x16x32_bf16 v[%d:%d], %s[%d:%d], v[%d:%d], %s", c, c + 3, wc, w, w + 3, h, h + 3, "0" if i == 0 else "v[%d:%d]" % (c, c + 3))
                n += 1
                if n in (2, 7, 12, 17): feed.emit(i, 1)
    stamp(k, 19)
    for sl in range(1, 4):
        e("s_add_u32 s17, s%d, %d", SW, sl); e("s_and_b32 s17, s17, 3"); e("s_mul_i32 s17, s17, 15360")
        e("s_add_u32 s17, s17, %d", LDS_B + (sl - 1) * 5120)
        e("v_add_u32 v7, s17, v%d", VL16)
        for T in range(5):
            r = ACC + (sl * 5 + T) * 4
            e("ds_write_b128 v7, v[%d:%d] offset:%d", r, r + 3, T * 1024)
    e("s_mul_i32 s17, s%d, 15360", SW); e("s_add_u32 s17, s17, %d", LDS_B)
    e("v_add_u32 v7, s17, v%d", VL16)
    e("s_waitcnt lgkmcnt(0)")
    e("s_barrier")
    for n in range(15):
        e("ds_read_b128 v[%d:%d], v7 offset:%d", RD + 4 * n, RD + 4 * n + 3, n * 1024)
    for s in range(3):
        e("s_waitcnt lgkmcnt(%d)", 5 * (2 - s))
        for i in range(0, 20, 2):
            e("v_pk_add_f32 v[%d:%d], v[%d:%d], v[%d:%d]", ACC + i, ACC + i + 1, ACC + i, ACC + i + 1, RD + s * 20 + i, RD + s * 20 + i + 1)
    stamp(k, 20)
    last = finish_tile(k, vm, ACC, RES, BI, True, SX2, SST2, k.layer == 1, TMPV)
    if k.layer == 1: return
    stamp(k, 21)
    e("s_barrier")
    setup_wq(k, WQ_B)
    for i in range(P["D4"]): dma(k, vm, 33, i * 4096, LDS_B + i * 4096)
    drain_and_signal(k, vm, last, 4, SRB)
    for i in range(P["D4"], 15): dma(k, vm, 33, i * 4096, LDS_B + i * 4096)
    stamp(k, 22)

def stamp_flush(k):
    e = k.e
    e("s_waitcnt vmcnt(0)")
    e("s_lshl_b32 s17, s2, 2"); e("s_add_u32 s17, s17, s%d", SW); e("s_lshl_b32 s17, s17, 8"); e("s_add_u32 s17, s17, 0x%x", STAMP)
    e("v_lshlrev_b32 v7, 2, v0")
    e("buffer_store_dword v%d, v7, s[4:7], s17 offen", VSTAMP)
import main_head
main_head.stamp_flush = stamp_flush

def gen_main(a, name="main_kernel"):
    k = K(a, name); e = a.e
    k.bg = None; k.layer = 0
    k.w2q = W2Q()
    kernel_begin(a, name)
    e("s_cmp_ge_u32 s2, 256"); e("s_cbranch_scc0 %s_go", name)
    e("s_endpgm")
    a.label(name + "_go")
    e("s_load_dwordx2 s[22:23], s[0:1], 88")
    e("s_load_dwordx2 s[24:25], s[0:1], 48")
    e("s_load_dwordx2 s[26:27], s[0:1], 64")
    e("s_load_dwordx2 s[28:29], s[0:1], 72")
    code_prefetch(a, None, name + "_end", 248, 16)
    e("v_lshrrev_b32 v6, 6, v0")
    e("v_and_b32 v0, 63, v0")
    e("v_readfirstlane_b32 s%d, v6", SW)
    e("v_lshlrev_b32 v%d, 4, v0", VL16)
    e("v_add_u32 v%d, 0x10000, v%d", VL16B, VL16)
    e("v_add_u32 v%d, 0x20000, v%d", VL16C, VL16)
    e("v_and_b32 v%d, 15, v0", VLO)
    e("v_lshrrev_b32 v%d, 4, v0", VQD)
    if DIAG: e("v_mov_b32 v%d, 0", VSTAMP)
    e("s_and_b32 s17, s2, 7"); e("s_lshr_b32 s18, s2, 3")
    e("s_lshr_b32 s19, s17, 1"); e("s_and_b32 s17, s17, 1")
    e("s_lshl_b32 s19, s19, 2"); e("s_and_b32 s3, s18, 3"); e("s_add_u32 s%d, s19, s3", SRB)
    e("s_lshr_b32 s%d, s18, 2", SCB)
    e("s_lshl_b32 s3, s17, 3"); e("s_add_u32 s%d, s3, s%d", SM, SCB)
    e("s_lshl_b32 s3, s%d, 1", SRB); e("s_add_u32 s%d, s3, s17", STB)
    e("s_lshl_b32 s%d, s%d, 3", STT0, SRB); e("s_lshl_b32 s3, s%d, 1", SW); e("s_add_u32 s%d, s%d, s3", STT0, STT0)
    e("s_lshl_b32 s%d, s%d, 2", STTW, STB); e("s_add_u32 s%d, s%d, s%d", STTW, STTW, SW)
    e("s_lshl_b32 s%d, s%d, 10", SM0, SW)
    e("s_mov_b32 s%d, 0", SAB)
    e("s_mul_i32 s%d, s%d, 286720", SW2, SCB); e("s_mul_i32 s17, s%d, 5120", SW); e("s_add_u32 s%d, s%d, s17", SW2, SW2); e("s_add_u32 s%d, s%d, 0x%x", SW2, SW2, W2)
    e("s_waitcnt lgkmcnt(0)")
    make_srd(a, 4, 22, WS_REC)
    make_srd(a, SRD_B1, 24, F * 2)
    make_srd(a, SRD_B2, 26, D * 2)
    make_srd(a, SRD_OUT, 28, S * D * 2)
    vm0 = VM()
    setup_wq(k)
    for i in range(25): dma(k, vm0, 33, i * 4096, i * 4096)
    for layer in range(2):
        k.layer = layer
        e("s_mov_b32 s%d, 0x%x", SXIN, XF[2 * layer]); e("s_mov_b32 s%d, 0x%x", SX1, XF[2 * layer + 1]); e("s_mov_b32 s%d, 0x%x", SX2, XF[2 * layer + 2 - 2 * layer * 0] if layer == 0 else XF[3])
        e("s_mov_b32 s%d, 0x%x", SSTIN, ST[2 * layer]); e("s_mov_b32 s%d, 0x%x", SST1, ST[2 * layer + 1]); e("s_mov_b32 s%d, 0x%x", SST2, ST[2] if layer == 0 else ST[3])
        e("s_mov_b32 s%d, 0x%x", SO, OB[layer]); e("s_mov_b32 s%d, 0x%x", SH, HB[layer]); e("s_mov_b32 s%d, 0x%x", SKV, KV[layer])
        e("s_mov_b32 s%d, 0x%x", SCNT, CNT + layer * 5 * 2048)
        phase1(k)
        phase2(k)
        phase3(k)
        phase4(k)
    assert k.w2q.n == 64
    a.label(name + "_end")
    e("s_endpgm")
    return dict(name=name, grid=256, block=256, lds=163840, vgpr=512, accum=256)
```

```python
from common import *

NA, NB, NC, ND, NE, NF = 96, 64, 144, 48, 128, 8
OA = 0; OB_ = OA + NA; OC = OB_ + NB; OD = OC + NC; OE = OD + ND; OF = OE + NE
PREP_TASKS = OF + NF

def gen_prep(a, name="prep_kernel"):
    kernel_begin(a, name)
    e = a.e
    e("s_cmp_ge_u32 s2, %d", PREP_TASKS); e("s_cbranch_scc1 %s_end", name)
    e("s_load_dwordx4 s[8:11], s[0:1], 0")
    e("s_load_dwordx4 s[12:15], s[0:1], 16")
    e("s_load_dwordx2 s[16:17], s[0:1], 40")
    e("s_load_dwordx2 s[20:21], s[0:1], 56")
    e("s_load_dwordx2 s[22:23], s[0:1], 88")
    VLO, VQD, VL16 = 1, 2, 3
    e("v_and_b32 v%d, 15, v0", VLO)
    e("v_lshrrev_b32 v%d, 4, v0", VQD)
    e("v_lshlrev_b32 v%d, 4, v0", VL16)
    ONES = 4
    for i in range(4): e("v_mov_b32 v%d, 0x3f803f80", ONES + i)
    SEL0, SEL1 = 8, 12
    build_selectors(a, VLO, VQD, SEL0, SEL1, 16, 17)
    e("s_waitcnt lgkmcnt(0)")
    make_srd(a, 4, 22, WS_REC)
    SRC = 24
    e("s_cmp_lt_u32 s2, %d", OB_); e("s_cbranch_scc1 %s_A", name)
    e("s_cmp_lt_u32 s2, %d", OC); e("s_cbranch_scc1 %s_B", name)
    e("s_cmp_lt_u32 s2, %d", OD); e("s_cbranch_scc1 %s_C", name)
    e("s_cmp_lt_u32 s2, %d", OE); e("s_cbranch_scc1 %s_D", name)
    e("s_cmp_lt_u32 s2, %d", OF); e("s_cbranch_scc1 %s_E", name)
    e("s_branch %s_F", name)

    LD = 32
    CC = 192
    FR = 208
    NM = 216
    BF0, BF1 = 224, 228
    TMP = 232
    VA, VD0, VD1 = 20, 21, 22
    T0, T1, T2, T3 = 25, 26, 27, 28

    def mf(c, x, b, srcc):
        e("v_mfma_f32_16x16x32_bf16 v[%d:%d], v[%d:%d], v[%d:%d], %s", c, c + 3, x, x + 3, b, b + 3, srcc)

    def colmean(n, B0, B1):
        for i in range(n):
            lo, hi = LD + 8 * i, LD + 8 * i + 4
            z = "0" if i == 0 else None
            mf(CC, lo, B0, z or "v[%d:%d]" % (CC, CC + 3))
            mf(CC + 4, hi, B0, z or "v[%d:%d]" % (CC + 4, CC + 7))
            mf(CC + 8, lo, B1, z or "v[%d:%d]" % (CC + 8, CC + 11))
            mf(CC + 12, hi, B1, z or "v[%d:%d]" % (CC + 12, CC + 15))
        for f in range(2):
            c = CC + 8 * f
            for i in range(1, 8): e("v_add_f32 v%d, v%d, v%d", c, c, c + i)
            e("v_mov_b32 v%d, v%d", T2, c)
            e("v_permlane32_swap_b32 v%d, v%d", c, T2)
            e("v_add_f32 v%d, v%d, v%d", c, c, T2)
            e("v_mov_b32 v%d, v%d", T2, c)
            e("v_permlane16_swap_b32 v%d, v%d", c, T2)
            e("v_add_f32 v%d, v%d, v%d", c, c, T2)
            e("v_mul_f32 v%d, 0x%x, v%d", NM + 4 * f, f32bits(-1.0 / 640), c)
            for i in range(1, 4): e("v_mov_b32 v%d, v%d", NM + 4 * f + i, NM + 4 * f)

    def unit_body(i, nunits, B0, B1, dst0, dst1, vd0, vd1, center, wait):
        nst = 2 * i
        if wait: e("s_waitcnt vmcnt(%d)", min(2 * (nunits - 1 - i) + nst, 63))
        lo, hi = LD + 8 * i, LD + 8 * i + 4
        c0 = "v[%d:%d]" % (NM, NM + 3) if center else "0"
        c1 = "v[%d:%d]" % (NM + 4, NM + 7) if center else "0"
        mf(CC, lo, B0, c0); mf(CC + 4, hi, B0, c0); mf(CC + 8, lo, B1, c1); mf(CC + 12, hi, B1, c1)
        for f in range(2):
            for q in range(4):
                e("v_cvt_pk_bf16_f32 v%d, v%d, v%d", FR + 4 * f + q, CC + 8 * f + 2 * q, CC + 8 * f + 2 * q + 1)
        e("buffer_store_dwordx4 v[%d:%d], v%d, s[4:7], s%d offen", FR, FR + 3, vd0, dst0)
        e("buffer_store_dwordx4 v[%d:%d], v%d, s[4:7], s%d offen", FR + 4, FR + 7, vd1, dst1)

    a.label(name + "_A")
    e("s_lshr_b32 s32, s2, 5")
    e("s_and_b32 s33, s2, 31")
    make_srd(a, SRC, 10, D * 3 * D * 2)
    e("v_mul_u32_u24 v%d, 3840, v%d", VA, VLO)
    e("v_lshl_add_u32 v%d, v%d, 4, v%d", VA, VQD, VA)
    e("s_mul_i32 s34, s32, 1280")
    e("s_mul_i32 s35, s33, 40"); e("s_add_u32 s34, s34, s35")
    for i in range(20):
        e("s_add_u32 s36, s34, %d", i * 32 * 3840)
        e("buffer_load_dwordx4 v[%d:%d], v%d, s[%d:%d], s36 offen", LD + 8 * i, LD + 8 * i + 3, VA, SRC, SRC + 3)
        e("s_add_u32 s36, s34, %d", i * 32 * 3840 + 16 * 3840)
        e("buffer_load_dwordx4 v[%d:%d], v%d, s[%d:%d], s36 offen", LD + 8 * i + 4, LD + 8 * i + 7, VA, SRC, SRC + 3)
    e("s_cmp_eq_u32 s32, 2"); e("s_cbranch_scc1 %s_Av", name)
    PH = 40
    make_srd(a, PH, 12, H * DH * DH * 2)
    e("s_mul_i32 s37, s33, 800")
    e("v_mov_b32 v%d, 0x%x", T3, OOB)
    for ft in range(2):
        for cls in range(2):
            e("v_mul_u32_u24 v%d, 320, v%d", T0, VQD)
            e("v_lshl_add_u32 v%d, v%d, 1, v%d", T0, VLO, T0)
            if ft: e("v_add_u32 v%d, 32, v%d", T0, T0)
            e("v_cmp_gt_u32 vcc, %d, v%d", 3 if cls == 0 else 2, VQD)
            e("v_cndmask_b32 v%d, v%d, v%d, vcc", T0, T3, T0)
            if ft:
                e("v_cmp_gt_u32 vcc, 4, v%d", VLO)
                e("v_cndmask_b32 v%d, v%d, v%d, vcc", T0, T3, T0)
            for ee in range(4):
                el = cls * 4 + ee
                e("buffer_load_ushort v%d, v%d, s[%d:%d], s37 offen offset:%d", TMP + ft * 8 + el, T0, PH, PH + 3, el * 40)
    e("s_waitcnt vmcnt(0)")
    for ft, BF in enumerate((BF0, BF1)):
        for dw in range(4):
            e("v_lshl_or_b32 v%d, v%d, 16, v%d", BF + dw, TMP + ft * 8 + 2 * dw + 1, TMP + ft * 8 + 2 * dw)
    e("s_branch %s_A2", name)
    a.label(name + "_Av")
    e("s_waitcnt vmcnt(0)")
    for dw in range(4):
        e("v_mov_b32 v%d, v%d", BF0 + dw, SEL0 + dw)
        e("v_mov_b32 v%d, v%d", BF1 + dw, SEL1 + dw)
    a.label(name + "_A2")
    a.fence()
    e("s_and_b32 s39, s33, 1"); e("s_lshl_b32 s38, s39, 1")
    e("s_cmp_eq_u32 s32, 2"); e("s_cselect_b32 s37, 10, 0")
    OOBR = 29
    e("v_mov_b32 v%d, 0x%x", OOBR, OOB)
    for ft, vd in ((0, VD0), (1, VD1)):
        e("v_add_u32 v%d, %d, v%d", T1, 16 * ft, VLO)
        e("v_cmp_le_u32 vcc, 10, v%d", T1)
        e("v_cndmask_b32 v%d, 0, 1, vcc", T0)
        e("v_mul_u32_u24 v%d, 10, v%d", T2, T0)
        e("v_sub_u32 v%d, v%d, v%d", T2, T1, T2)
        e("v_add_u32 v%d, s37, v%d", T2, T2)
        e("v_add_u32 v%d, s38, v%d", T0, T0)
        e("v_lshrrev_b32 v%d, 2, v%d", vd, T2)
        e("v_lshlrev_b32 v%d, 10, v%d", vd, vd)
        e("v_and_b32 v%d, 3, v%d", 30, T2)
        e("v_lshl_add_u32 v%d, v%d, 2, v%d", 30, T0, 30)
        e("v_lshl_add_u32 v%d, v%d, 4, v%d", 30, VQD, 30)
        e("v_lshl_add_u32 v%d, v%d, 4, v%d", vd, 30, vd)
        if ft:
            e("v_cmp_gt_u32 vcc, 4, v%d", VLO)
            e("v_cndmask_b32 v%d, v%d, v%d, vcc", vd, OOBR, vd)
    colmean(20, BF0, BF1)
    e("s_lshr_b32 s38, s33, 1")
    e("s_mul_i32 s39, s38, %d", WQ_J); e("s_add_u32 s39, s39, 0x%x", WQ)
    e("s_cmp_eq_u32 s32, 0"); e("s_cselect_b32 s36, %d, 0", WQ_B); e("s_movk_i32 s37, 5120"); e("s_cselect_b32 s37, 3072, s37")
    e("s_add_u32 s36, s36, s39")
    for i in range(20):
        unit_body(i, 20, BF0, BF1, 36, 36, VD0, VD1, True, False)
        e("s_add_u32 s36, s36, s37")
    e("s_endpgm")

    a.label(name + "_B")
    e("s_sub_u32 s30, s2, %d", OB_)
    e("s_lshr_b32 s31, s30, 2")
    e("s_and_b32 s32, s30, 3")
    e("s_and_b32 s34, s31, 7"); e("s_mul_i32 s35, s34, 7")
    e("s_cmp_eq_u32 s34, 7"); e("s_cselect_b32 s35, 48, s35")
    e("s_lshr_b32 s34, s31, 3"); e("s_mul_i32 s34, s34, 54"); e("s_add_u32 s35, s35, s34")
    e("s_lshl_b32 s34, s32, 1"); e("s_add_u32 s35, s35, s34")
    make_srd(a, SRC, 16, D * F * 2)
    e("v_mul_u32_u24 v%d, 3456, v%d", VA, VLO)
    e("v_lshl_add_u32 v%d, v%d, 4, v%d", VA, VQD, VA)
    e("s_lshl_b32 s36, s35, 5")
    for i in range(20):
        e("s_add_u32 s37, s36, %d", i * 32 * 3456)
        e("buffer_load_dwordx4 v[%d:%d], v%d, s[%d:%d], s37 offen", LD + 8 * i, LD + 8 * i + 3, VA, SRC, SRC + 3)
        e("s_add_u32 s37, s36, %d", i * 32 * 3456 + 16 * 3456)
        e("buffer_load_dwordx4 v[%d:%d], v%d, s[%d:%d], s37 offen", LD + 8 * i + 4, LD + 8 * i + 7, VA, SRC, SRC + 3)
    e("v_mov_b32 v%d, v%d", VD0, VL16)
    e("s_cmp_eq_u32 s32, 3"); e("s_cselect_b32 s38, 0x%x, 0", OOB)
    e("v_add_u32 v%d, s38, v%d", VD1, VL16)
    e("s_waitcnt vmcnt(0)")
    colmean(20, SEL0, SEL1)
    e("s_mul_i32 s39, s31, 143360")
    e("s_lshl_b32 s40, s32, 11"); e("s_add_u32 s39, s39, s40"); e("s_add_u32 s39, s39, 0x%x", W1)
    for i in range(20):
        e("s_add_u32 s40, s39, %d", i * 7 * 1024)
        e("s_add_u32 s41, s39, %d", i * 7 * 1024 + 1024)
        unit_body(i, 20, SEL0, SEL1, 40, 41, VD0, VD1, True, False)
    e("s_endpgm")

    a.label(name + "_C")
    e("s_sub_u32 s30, s2, %d", OC)
    e("s_mul_hi_u32 s31, s30, 0x2AAAAAAB")
    e("s_mul_i32 s32, s31, 6"); e("s_sub_u32 s33, s30, s32")
    e("s_mul_hi_u32 s34, s31, 0x55555556")
    e("s_mul_i32 s32, s34, 3"); e("s_sub_u32 s32, s31, s32")
    make_srd(a, SRC, 20, F * D * 2)
    e("v_mul_u32_u24 v%d, 1280, v%d", VA, VLO)
    e("v_lshl_add_u32 v%d, v%d, 4, v%d", VA, VQD, VA)
    e("s_mul_i32 s36, s33, %d", 9 * 32 * 1280)
    e("s_mul_i32 s37, s34, 160"); e("s_add_u32 s36, s36, s37")
    e("s_lshl_b32 s37, s32, 6"); e("s_add_u32 s36, s36, s37")
    for i in range(9):
        e("s_add_u32 s37, s36, %d", i * 32 * 1280)
        e("buffer_load_dwordx4 v[%d:%d], v%d, s[%d:%d], s37 offen", LD + 8 * i, LD + 8 * i + 3, VA, SRC, SRC + 3)
        e("s_add_u32 s37, s36, %d", i * 32 * 1280 + 16 * 1280)
        e("buffer_load_dwordx4 v[%d:%d], v%d, s[%d:%d], s37 offen", LD + 8 * i + 4, LD + 8 * i + 7, VA, SRC, SRC + 3)
    e("v_mov_b32 v%d, v%d", VD0, VL16)
    e("s_cmp_eq_u32 s32, 2"); e("s_cselect_b32 s38, 0x%x, 0", OOB)
    e("v_add_u32 v%d, s38, v%d", VD1, VL16)
    e("s_mul_i32 s39, s34, 286720"); e("s_mul_i32 s40, s33, %d", 45 * 1024); e("s_add_u32 s39, s39, s40")
    e("s_lshl_b32 s40, s32, 11"); e("s_add_u32 s39, s39, s40"); e("s_add_u32 s39, s39, 0x%x", W2)
    for i in range(9):
        e("s_add_u32 s40, s39, %d", i * 5 * 1024)
        e("s_add_u32 s41, s39, %d", i * 5 * 1024 + 1024)
        unit_body(i, 9, SEL0, SEL1, 40, 41, VD0, VD1, False, True)
    e("s_endpgm")

    a.label(name + "_D")
    e("s_sub_u32 s30, s2, %d", OD)
    e("s_lshr_b32 s31, s30, 1")
    e("s_and_b32 s33, s30, 1")
    e("s_mul_hi_u32 s34, s31, 0x55555556")
    e("s_mul_i32 s32, s34, 3"); e("s_sub_u32 s32, s31, s32")
    make_srd(a, SRC, 14, D * D * 2)
    e("s_mul_i32 s37, s34, 160")
    e("s_lshl_b32 s36, s32, 6"); e("s_add_u32 s36, s36, s37")
    e("v_and_b32 v%d, 3, v%d", T0, VLO)
    e("v_lshrrev_b32 v%d, 2, v%d", T1, VLO)
    e("v_mul_u32_u24 v%d, 10, v%d", T1, T1)
    e("v_add_u32 v%d, v%d, v%d", T2, T1, T0)
    e("v_and_b32 v%d, 1, v%d", T3, T0)
    e("v_add3_u32 v%d, v%d, v%d, 8", T3, T3, T1)
    e("v_lshrrev_b32 v%d, 1, v%d", 30, T0)
    e("v_mul_u32_u24 v%d, 40, v%d", 30, 30)
    e("v_add_u32 v%d, v%d, v%d", T3, T3, 30)
    for T in (T2, T3):
        e("v_mul_u32_u24 v%d, 1280, v%d", T, T)
        e("v_lshl_add_u32 v%d, v%d, 4, v%d", T, VQD, T)
    e("s_cmp_eq_u32 s33, 1"); e("s_cbranch_scc1 %s_D1", name)
    for g in range(2):
        if g == 1:
            a.label(name + "_D1"); a.fence()
        for i in range(10):
            kap = 10 * g + i
            for half in range(2):
                if kap < 16: row, v = 40 * kap + 4 * half, T2
                else: row, v = 160 * (kap - 16) + 80 * half, T3
                e("s_add_u32 s37, s36, %d", row * 1280)
                e("buffer_load_dwordx4 v[%d:%d], v%d, s[%d:%d], s37 offen", LD + 8 * i + 4 * half, LD + 8 * i + 4 * half + 3, v, SRC, SRC + 3)
        if g == 0: e("s_branch %s_D2", name)
    a.label(name + "_D2"); a.fence()
    e("v_mov_b32 v%d, v%d", VD0, VL16)
    e("s_cmp_eq_u32 s32, 2"); e("s_cselect_b32 s38, 0x%x, 0", OOB)
    e("v_add_u32 v%d, s38, v%d", VD1, VL16)
    e("s_mul_i32 s39, s34, %d", 100 * 1024); e("s_mul_i32 s40, s33, %d", 50 * 1024); e("s_add_u32 s39, s39, s40")
    e("s_lshl_b32 s40, s32, 11"); e("s_add_u32 s39, s39, s40"); e("s_add_u32 s39, s39, 0x%x", WO)
    for i in range(10):
        e("s_add_u32 s40, s39, %d", i * 5 * 1024)
        e("s_add_u32 s41, s39, %d", i * 5 * 1024 + 1024)
        unit_body(i, 10, SEL0, SEL1, 40, 41, VD0, VD1, False, True)
    e("s_endpgm")

    a.label(name + "_E")
    e("s_sub_u32 s30, s2, %d", OE)
    make_srd(a, SRC, 8, S * D * 2)
    e("v_mul_u32_u24 v%d, 1280, v%d", VA, VLO)
    e("v_lshl_add_u32 v%d, v%d, 3, v%d", VA, VQD, VA)
    e("s_mul_i32 s36, s30, %d", 16 * 1280)
    XR = 32
    for k in range(20):
        e("buffer_load_dwordx2 v[%d:%d], v%d, s[%d:%d], s36 offen offset:%d", XR + 4 * k, XR + 4 * k + 1, VA, SRC, SRC + 3, k * 64)
        e("buffer_load_dwordx2 v[%d:%d], v%d, s[%d:%d], s36 offen offset:%d", XR + 4 * k + 2, XR + 4 * k + 3, VA, SRC, SRC + 3, k * 64 + 32)
    e("v_mov_b32 v%d, 0", T0); e("v_mov_b32 v%d, 0", T1)
    e("s_mul_i32 s37, s30, 20480"); e("s_add_u32 s37, s37, 0x%x", XF[0])
    for k in range(20):
        e("s_waitcnt vmcnt(%d)", min(2 * (19 - k) + k, 63))
        if k and k % 4 == 0: e("s_add_u32 s37, s37, 4096")
        e("buffer_store_dwordx4 v[%d:%d], v%d, s[4:7], s37 offen offset:%d", XR + 4 * k, XR + 4 * k + 3, VL16, (k % 4) * 1024)
        for q in range(4):
            e("v_dot2_f32_bf16 v%d, v%d, v%d, v%d", T0, XR + 4 * k + q, ONES, T0)
            e("v_dot2_f32_bf16 v%d, v%d, v%d, v%d", T1, XR + 4 * k + q, XR + 4 * k + q, T1)
    for T in (T0, T1):
        e("v_mov_b32 v%d, v%d", T2, T)
        e("v_permlane32_swap_b32 v%d, v%d", T, T2)
        e("v_add_f32 v%d, v%d, v%d", T, T, T2)
        e("v_mov_b32 v%d, v%d", T2, T)
        e("v_permlane16_swap_b32 v%d, v%d", T, T2)
        e("v_add_f32 v%d, v%d, v%d", T, T, T2)
    SV = 112
    e("v_cmp_eq_u32 vcc, 0, v%d", VQD)
    e("v_cndmask_b32 v%d, 0, v%d, vcc", SV, T0)
    e("v_cndmask_b32 v%d, 0, v%d, vcc", SV + 1, T1)
    e("v_mov_b32 v%d, 0", SV + 2); e("v_mov_b32 v%d, 0", SV + 3)
    e("v_lshlrev_b32 v%d, 6, v%d", T2, VLO)
    e("v_lshl_add_u32 v%d, v%d, 4, v%d", T2, VQD, T2)
    e("s_lshl_b32 s37, s30, 10"); e("s_add_u32 s37, s37, 0x%x", ST[0])
    e("buffer_store_dwordx4 v[%d:%d], v%d, s[4:7], s37 offen", SV, SV + 3, T2)
    e("s_endpgm")

    a.label(name + "_F")
    e("s_sub_u32 s30, s2, %d", OF)
    for i in range(4): e("v_mov_b32 v%d, 0", 32 + i)
    e("s_mul_i32 s36, s30, 49152"); e("s_add_u32 s36, s36, 0x%x", KV[0])
    for i in range(48):
        if i and i % 4 == 0: e("s_add_u32 s36, s36, 4096")
        e("buffer_store_dwordx4 v[32:35], v%d, s[4:7], s36 offen offset:%d", VL16, (i % 4) * 1024)
    e("s_mul_i32 s36, s30, 286720"); e("s_add_u32 s36, s36, 0x%x", W2 + 54 * 5120)
    for i in range(10):
        if i and i % 4 == 0: e("s_add_u32 s36, s36, 4096")
        e("buffer_store_dwordx4 v[32:35], v%d, s[4:7], s36 offen offset:%d", VL16, (i % 4) * 1024)
    e("s_mul_i32 s36, s30, 3072"); e("s_add_u32 s36, s36, 0x%x", CNT)
    for i in range(3):
        e("buffer_store_dwordx4 v[32:35], v%d, s[4:7], s36 offen offset:%d", VL16, i * 1024)
    a.label(name + "_end")
    e("s_endpgm")
    return dict(name=name, grid=PREP_TASKS, block=64, lds=0, vgpr=248, accum=None)
```

```python
import sys
sys.path.insert(0, "gen2")
from common import *
from prep import gen_prep
from phases import gen_main

def build():
    a = Asm()
    ks = [gen_prep(a), gen_main(a)]
    hdr = ""
    for k in ks:
        hdr += "; @launch kernel=%s grid=(%d,1,1) block=(%d,1,1) lds=%d\n" % (k["name"], k["grid"], k["block"], k["lds"])
    st = {}
    txt = hdr + HEADER + a.text(st) + '.section .rodata,"a"\n'
    for k in ks:
        txt += kernel_desc(k["name"], k["vgpr"], accum=k["accum"])
    return txt, st

if __name__ == "__main__":
    out = sys.argv[1]
    txt, st = build()
    open(out, "w").write(txt)
    print("wrote", out, len(txt), "bytes", st)
```

```python
S, D, H, DH, F = 2048, 640, 32, 20, 1728
XF = [0x0000000, 0x0300000, 0x0600000, 0x0900000]
XF_STRIDE = 0x300000
ST = [0x0C00000, 0x0C20000, 0x0C40000, 0x0C60000]
ST_STRIDE = 0x20000
CNT = 0x0D00000
CNT_BYTES = 2 * 5 * 16 * 128
WQ = 0x0E00000
WQ_J = 163840
WQ_B = 102400
WO = 0x1100000
W1 = 0x1200000
W2 = 0x1500000
KV = [0x1800000, 0x1830000]
KV_STRIDE = 0x30000
KV_HEAD = 6144
OB = [0x1900000, 0x1C00000]
OB_STRIDE = 0x300000
HB = [0x2000000, 0x2800000]
HB_STRIDE = 0x800000
STAMP = 0x3800000
WS_REC = 0x4000000
OOB = 0x40000000
TB1 = [cg * 54 + o for cg in range(2) for o in (0, 7, 14, 21, 28, 35, 42, 48)]
NT1 = [7, 7, 7, 7, 7, 7, 6, 6] * 2

def xt(kappa):
    if kappa < 16:
        cb, p = kappa >> 1, kappa & 1
        return (5 * cb + 2 * p, 5 * cb + 2 * p + 1)
    s = kappa - 16
    return (10 * s + 4, 10 * s + 9)
def ht(kappa):
    m, p = divmod(kappa, 3)
    if kappa < 48:
        return (TB1[m] + 2 * p, TB1[m] + 2 * p + 1)
    return (54 * (m - 16) + 14 * p + 6, 54 * (m - 16) + 14 * p + 13)
assert sorted(sum((list(xt(k)) for k in range(20)), [])) == list(range(40))
assert sorted(sum((list(ht(k)) for k in range(54)), [])) == list(range(108))
assert all((k * 43) >> 7 == k // 3 for k in range(54))
```

```python
from common import *

SW, SRB, SM, SL, STB, SCB = 8, 9, 10, 11, 12, 13
SXIN, SX1, SX2, SSTIN, SST1, SST2, SO, SH, SKV, SCNT, SAB = 48, 49, 50, 51, 52, 53, 54, 55, 56, 57, 58
STT0 = 59
STTW = 60
SM0 = 61
SRD_B1, SRD_B2, SRD_OUT = 36, 40, 44
VL16, VL16B, VL16C, VLO, VQD, VZ = 1, 2, 3, 4, 5, 6
VSTAMP = 6
LDS_B = 102400

class K:
    def __init__(self, a, name):
        self.a = a; self.e = a.e; self.name = name; self.nst = 0

def stamp(k, i):
    if not DIAG: return
    e = k.e
    e("s_memrealtime s[98:99]" if os.environ.get("RT") else "s_memtime s[98:99]")
    e("s_mov_b32 m0, %d", k.layer * 32 + i)
    e("s_waitcnt lgkmcnt(0)")
    e("v_writelane_b32 v%d, s98, m0", VSTAMP)
    if i == 0 and k.layer == 0: e("s_mov_b32 s96, s98")

def lds_addr(off):
    return (VL16, VL16B, VL16C)[off >> 16], off & 0xffff

def dma(k, vm, goff_sgpr, gimm, lds_off, per_wave_m0=True):
    e = k.e
    e("s_add_u32 m0, s%d, %d", SM0, lds_off)
    e("s_add_u32 s17, s%d, %d", goff_sgpr, gimm)
    e("buffer_load_dwordx4 v%d, s[4:7], s17 offen lds", VL16)
    return vm.issue()

class BG:
    def __init__(self, k=None, vm=None): self.q = []; self.last = None; self.k = k; self.vm = vm
    def add(self, fn, l0=False):
        if l0 and self.k.layer != 0: return
        self.q.append(fn)
    def emit(self, n=1):
        c = 0
        while c < n and self.q:
            self.last = self.q.pop(0)(); c += 1
        return c
    def flush(self): self.emit(len(self.q))

def q_dma(k, vm, bg, sreg, setup, n, lds0, goff0=0, l0=False, order=None):
    first = (order[0] if order is not None else 0)
    def mk(i):
        def f():
            if i == first and setup is not None: setup()
            return dma(k, vm, sreg, goff0 + i * 4096, lds0 + i * 4096)
        return f
    for i in (order if order is not None else range(n)): bg.add(mk(i), l0)

VTOUCH = 254
def touch(k, vm, base, nbytes_fn, nbytes, half):
    e = k.e
    per = nbytes // 128
    lines = (per + 127) // 128
    e("s_lshr_b32 s17, s2, 3"); e("s_and_b32 s17, s17, 31"); e("s_lshl_b32 s17, s17, 2"); e("s_add_u32 s17, s17, s%d", SW)
    e("s_mul_i32 s17, s17, %d", per)
    e("s_add_u32 s17, s17, 0x%x", base)
    if half:
        e("s_lshr_b32 s18, s%d, 3", SM); e("s_mul_i32 s18, s18, %d", nbytes); e("s_add_u32 s17, s17, s18")
    e("v_lshlrev_b32 v7, 7, v0")
    for i in range((lines + 63) // 64):
        if i: e("s_add_u32 s17, s17, 8192")
        rem = lines - 64 * i
        if rem < 64:
            e("s_mov_b64 exec, 0x%x", (1 << rem) - 1) if rem <= 32 else (e("s_mov_b32 exec_lo, -1"), e("s_mov_b32 exec_hi, 0x%x", (1 << (rem - 32)) - 1))
        e("buffer_load_dword v%d, v7, s[4:7], s17 offen", VTOUCH); vm.issue()
        if rem < 64: e("s_mov_b64 exec, -1")

def touch_wq(k, vm): touch(k, vm, WQ, None, 8 * WQ_J, True)
def touch_w1(k, vm): touch(k, vm, W1, None, 8 * 143360, True)
def touch_wo(k, vm): touch(k, vm, WO, None, 8 * 102400, False)
def touch_w2(k, vm): touch(k, vm, W2, None, 8 * 286720, False)

def signal(k, phase, s_idx):
    e = k.e
    lab = k.a.newlabel("sig")
    e("s_cmp_lg_u32 s%d, 0", SW); e("s_cbranch_scc1 %s", lab)
    e("s_lshl_b32 s17, s%d, 7", s_idx); e("s_add_u32 s17, s17, s%d", SCNT)
    e("s_add_u32 s17, s17, %d", phase * 2048)
    e("s_mov_b64 exec, 1")
    e("v_mov_b32 v7, 1")
    e("buffer_atomic_add v7, off, s[4:7], s17")
    e("s_mov_b64 exec, -1")
    k.a.label(lab)

def wait_cnt(k, phase, s_idx, prev_layer=False):
    e = k.e
    lab = k.a.newlabel("wbar"); lp = k.a.newlabel("poll"); ld = k.a.newlabel("pdone")
    e("s_cmp_lg_u32 s%d, 0", SW); e("s_cbranch_scc1 %s", lab)
    e("s_cmp_lg_u32 s%d, 0", SAB); e("s_cbranch_scc1 %s", lab)
    e("s_lshl_b32 s17, s%d, 7", s_idx); e("s_add_u32 s17, s17, s%d", SCNT)
    if prev_layer: e("s_sub_u32 s17, s17, %d", 5 * 2048 - phase * 2048)
    else: e("s_add_u32 s17, s17, %d", phase * 2048)
    e("s_mov_b32 s18, 0")
    if DIAG3 and phase in (1, 2): stamp(k, D3ID[phase] + 2)
    e("s_mov_b64 exec, 1")
    k.a.label(lp)
    e("buffer_load_dword v7, off, s[4:7], s17 sc1")
    e("s_waitcnt vmcnt(0)")
    e("v_readfirstlane_b32 s19, v7")
    e("s_cmp_ge_u32 s19, 16"); e("s_cbranch_scc1 %s", ld)
    e("s_add_u32 s18, s18, 1")
    e("s_cmp_lt_u32 s18, 0x20000"); e("s_cbranch_scc1 %s", lp)
    e("s_mov_b32 s%d, 1", SAB)
    k.a.label(ld)
    e("s_mov_b64 exec, -1")
    if DIAG3 and phase in (1, 2):
        e("s_mov_b32 m0, %d", k.layer * 32 + D3ID[phase] + 3); e("s_nop 0"); e("s_add_u32 s18, s18, s96"); e("v_writelane_b32 v%d, s18, m0", VSTAMP)
    k.a.label(lab)
    e("s_waitcnt vmcnt(0)")
    e("s_barrier")

def issue_stats(k, vm, st_sgpr, tt_sgpr, ntt, dst):
    e = k.e
    e("v_lshlrev_b32 v7, 3, v%d", VLO); e("v_lshl_add_u32 v7, v%d, 8, v7", VQD)
    e("s_lshl_b32 s17, s%d, 10", tt_sgpr); e("s_add_u32 s17, s17, s%d", st_sgpr)
    last = None
    for tt in range(ntt):
        for h in range(2):
            e("buffer_load_dwordx2 v[%d:%d], v7, s[4:7], s17 offen offset:%d sc1", dst + 4 * tt + 2 * h, dst + 4 * tt + 2 * h + 1, tt * 1024 + h * 128); last = vm.issue()
    return last

def xfrag_load(k, vm, b, sx, kk):
    e = k.e
    if kk < 16:
        e("buffer_load_dwordx4 v[%d:%d], v%d, s[4:7], s%d offen offset:%d sc1", b, b + 3, VL16, sx, (kk % 4) * 1024)
        return vm.issue()
    e("v_lshlrev_b32 v7, 3, v0")
    e("buffer_load_dwordx2 v[%d:%d], v7, s[4:7], s%d offen offset:%d sc1", b, b + 1, sx, (kk % 4) * 1024); vm.issue()
    e("buffer_load_dwordx2 v[%d:%d], v7, s[4:7], s%d offen offset:%d sc1", b + 2, b + 3, sx, (kk % 4) * 1024 + 512)
    return vm.issue()

def stats_finish(k, ST4, R, T, double):
    e = k.e
    e("v_add_f32 v%d, v%d, v%d", ST4, ST4, ST4 + 2)
    e("v_add_f32 v%d, v%d, v%d", ST4 + 1, ST4 + 1, ST4 + 3)
    e("v_permlane16_swap_b32 v%d, v%d", ST4, ST4 + 1)
    e("v_add_f32 v%d, v%d, v%d", ST4, ST4, ST4 + 1)
    e("v_mov_b32 v%d, v%d", ST4 + 1, ST4)
    e("v_permlane32_swap_b32 v%d, v%d", ST4, ST4 + 1)
    e("v_add_f32 v%d, v%d, v%d", ST4, ST4, ST4 + 1)
    e("v_mov_b32 v%d, v%d", ST4 + 1, ST4)
    e("v_permlane16_swap_b32 v%d, v%d", ST4, ST4 + 1)
    e("v_mul_f32 v%d, 0x%x, v%d", ST4, f32bits(1.0 / 640), ST4)
    e("v_mul_f32 v%d, 0x%x, v%d", R, f32bits(1.0 / 640), ST4 + 1)
    e("v_fma_f32 v%d, -v%d, v%d, v%d", R, ST4, ST4, R)
    e("v_max_f32 v%d, 0, v%d", R, R)
    if not double:
        e("v_add_f32 v%d, 0x%x, v%d", R, f32bits(1e-5), R)
        e("v_rsq_f32 v%d, v%d", R, R)
    else:
        e("v_add_f32 v%d, 0x%x, v%d", T, f32bits(1e-5), R)
        e("v_rcp_f32 v%d, v%d", T + 1, T)
        e("v_rsq_f32 v%d, v%d", T, T)
        e("v_mul_f32 v%d, v%d, v%d", R, R, T + 1)
        e("v_add_f32 v%d, 0x%x, v%d", R, f32bits(1e-5), R)
        e("v_rsq_f32 v%d, v%d", R, R)
        e("v_mul_f32 v%d, v%d, v%d", R, R, T)

def lds_gemm(k, nk, ntile, ntt, lds_off, breg, acc, afr, nbuf, wait_b=None, hook=None, bcls="a", acls="a", zero_first=True):
    e = k.e
    def rd(kk):
        for t in range(ntile):
            base, off = lds_addr(lds_off(kk, t))
            r = afr + ((kk % nbuf) * ntile + t) * 4
            e("ds_read_b128 %s[%d:%d], v%d offset:%d", acls, r, r + 3, base, off)
    def rd1(kk, t):
        base, off = lds_addr(lds_off(kk, t))
        r = afr + ((kk % nbuf) * ntile + t) * 4
        e("ds_read_b128 %s[%d:%d], v%d offset:%d", acls, r, r + 3, base, off)
    for kk in range(min(nbuf - 1, nk)): rd(kk)
    for kk in range(nk):
        ahead = min(nbuf - 2, nk - 1 - kk) * ntile
        if wait_b: wait_b(kk, min(ahead, 15))
        else: e("s_waitcnt lgkmcnt(%d)", min(ahead, 15))
        n = 0
        for t in range(ntile):
            for tt in range(ntt):
                c = acc(tt, t)
                ra = afr + ((kk % nbuf) * ntile + t) * 4
                rb = breg(kk, tt)
                src = "0" if (kk == 0 and zero_first) else "v[%d:%d]" % (c, c + 3)
                e("v_mfma_f32_16x16x32_bf16 v[%d:%d], %s[%d:%d], %s[%d:%d], %s", c, c + 3, acls, ra, ra + 3, bcls, rb, rb + 3, src)
                n += 1
                kn = kk + nbuf - 1
                if kn < nk and (n - 1) % ntt == 0 and (n - 1) // ntt < ntile:
                    rd1(kn, (n - 1) // ntt)
                if hook: hook(kk, n)

def gemm2(k, nk, ntile, ntt, lds_off, breg, acc, afr, nbuf, need_b=None, hook=None):
    a, e = k.a, k.e
    lm = {}; st = dict(n=0, ret=-1)
    def rd1(kn, t):
        base, off = lds_addr(lds_off(kn, t))
        r = afr + ((kn % nbuf) * ntile + t) * 4
        e("ds_read_b128 v[%d:%d], v%d offset:%d", r, r + 3, base, off)
        lm[(kn, t)] = st["n"]; st["n"] += 1
    for kk in range(min(nbuf - 1, nk)):
        for t in range(ntile): rd1(kk, t)
    for kk in range(nk):
        n = 0
        for t in range(ntile):
            idx = lm[(kk, t)]
            lg = None
            if idx > st["ret"]:
                lg = min(15, st["n"] - 1 - idx)
                st["ret"] = max(idx, st["n"] - 1 - lg)
            if t == 0 and need_b is not None:
                need_b(kk, (" lgkmcnt(%d)" % lg) if lg is not None else "")
            elif lg is not None:
                e("s_waitcnt lgkmcnt(%d)", lg)
            for tt in range(ntt):
                c = acc(tt, t)
                ra = afr + ((kk % nbuf) * ntile + t) * 4
                rb = breg(kk, tt)
                src = "0" if kk == 0 else "v[%d:%d]" % (c, c + 3)
                e("v_mfma_f32_16x16x32_bf16 v[%d:%d], v[%d:%d], v[%d:%d], %s", c, c + 3, ra, ra + 3, rb, rb + 3, src)
                n += 1
                kn = kk + nbuf - 1
                if kn < nk and n <= ntile: rd1(kn, n - 1)
                if hook: hook(kk, n)

class Feed:
    def __init__(self, vm, ring=None):
        self.q = []; self.done = {}; self.vm = vm; self.ring = ring; self.waited = None
    def add(self, step, fn): self.q.append((step, fn))
    def emit(self, kk, n=1):
        c = 0
        while c < n and self.q:
            step, fn = self.q[0]
            if self.ring is not None and step - self.ring >= max(kk, 0): break
            self.q.pop(0); self.done[step] = fn(); c += 1
        return c
    def need(self, a):
        def f(kk, extra):
            assert all(s > kk for s, _ in self.q), "step %d loads not issued" % kk
            self.vm.wait_for(a, self.done[kk], extra)
        return f

def tick(k, c):
    if k.bg is None: return
    k.acc += c
    if k.acc >= k.period:
        k.acc = 0; k.bg.emit(1)

def softmax_pm(k, A0, C, PK, EP, EN, TM):
    e = k.e
    MX, NM_, CM, CN = TM, TM + 1, TM + 2, TM + 4
    e("v_max3_f32 v%d, v%d, v%d, v%d", MX, A0, A0 + 1, A0 + 2)
    e("v_max3_f32 v%d, -v%d, -v%d, -v%d", NM_, A0, A0 + 1, A0 + 2)
    for i in (3, 5, 7):
        e("v_max3_f32 v%d, v%d, v%d, v%d", MX, MX, A0 + i, A0 + i + 1)
        e("v_max3_f32 v%d, v%d, -v%d, -v%d", NM_, NM_, A0 + i, A0 + i + 1)
    e("v_max_f32 v%d, v%d, v%d", MX, MX, A0 + 9)
    e("v_max_f32 v%d, v%d, -v%d", NM_, NM_, A0 + 9)
    tick(k, 48)
    e("v_permlane16_swap_b32 v%d, v%d", MX, NM_)
    e("v_max_f32 v%d, v%d, v%d", MX, MX, NM_)
    e("v_mov_b32 v%d, v%d", NM_, MX)
    e("v_permlane16_swap_b32 v%d, v%d", MX, NM_)
    e("v_mul_f32 v%d, v%d, v%d", CM, MX, C)
    e("v_mul_f32 v%d, v%d, v%d", CN, NM_, C)
    for i in range(5):
        e("v_pk_fma_f32 v[%d:%d], v[%d:%d], v[%d:%d], v[%d:%d] op_sel_hi:[1,0,0] neg_lo:[0,0,1] neg_hi:[0,0,1]",
          EP + 2 * i, EP + 2 * i + 1, A0 + 2 * i, A0 + 2 * i + 1, C, C + 1, CM, CM + 1)
        e("v_pk_fma_f32 v[%d:%d], v[%d:%d], v[%d:%d], v[%d:%d] op_sel_hi:[1,0,0] neg_lo:[1,0,1] neg_hi:[1,0,1]",
          EN + 2 * i, EN + 2 * i + 1, A0 + 2 * i, A0 + 2 * i + 1, C, C + 1, CN, CN + 1)
        tick(k, 16)
    for i in range(10):
        e("v_exp_f32 v%d, v%d", EP + i, EP + i)
        e("v_exp_f32 v%d, v%d", EN + i, EN + i)
        tick(k, 32)
    for E, Sx in ((EP, CM), (EN, CN)):
        e("v_pk_add_f32 v[%d:%d], v[%d:%d], v[%d:%d]", Sx, Sx + 1, E, E + 1, E + 2, E + 3)
    for E, Sx in ((EP, CM), (EN, CN)):
        e("v_pk_add_f32 v[%d:%d], v[%d:%d], v[%d:%d]", MX if False else Sx, Sx + 1, Sx, Sx + 1, E + 4, E + 5)
    for E, Sx in ((EP, CM), (EN, CN)):
        e("v_pk_add_f32 v[%d:%d], v[%d:%d], v[%d:%d]", Sx, Sx + 1, Sx, Sx + 1, E + 6, E + 7)
    for E, Sx in ((EP, CM), (EN, CN)):
        e("v_pk_add_f32 v[%d:%d], v[%d:%d], v[%d:%d]", Sx, Sx + 1, Sx, Sx + 1, E + 8, E + 9)
    tick(k, 64)
    e("v_add_f32 v%d, v%d, v%d", CM, CM, CM + 1)
    e("v_add_f32 v%d, v%d, v%d", CN, CN, CN + 1)
    e("v_permlane16_swap_b32 v%d, v%d", CM, CN)
    e("v_add_f32 v%d, v%d, v%d", CM, CM, CN)
    e("v_mov_b32 v%d, v%d", CN, CM)
    e("v_permlane16_swap_b32 v%d, v%d", CM, CN)
    e("v_rcp_f32 v%d, v%d", CM, CM)
    e("v_rcp_f32 v%d, v%d", CN, CN)
    for i in range(5):
        e("v_pk_mul_f32 v[%d:%d], v[%d:%d], v[%d:%d] op_sel_hi:[1,0]", EP + 2 * i, EP + 2 * i + 1, EP + 2 * i, EP + 2 * i + 1, CM, CM + 1)
        e("v_pk_mul_f32 v[%d:%d], v[%d:%d], v[%d:%d] op_sel_hi:[1,0]", EN + 2 * i, EN + 2 * i + 1, EN + 2 * i, EN + 2 * i + 1, CN, CN + 1)
        tick(k, 24)
    for i in range(5):
        e("v_cvt_pk_bf16_f32 v%d, v%d, v%d", PK + i, EP + 2 * i, EP + 2 * i + 1)
    tick(k, 20)
    for i in range(5):
        e("v_cvt_pk_bf16_f32 v%d, v%d, v%d", PK + 5 + i, EN + 2 * i, EN + 2 * i + 1)
    tick(k, 20)

DIAG3 = int(os.environ.get("DIAG", "0")) == 3
D3ID = {1: 23, 2: 27, 3: 15, 4: 19}
def drain_and_signal(k, vm, last_store, phase, s_idx):
    vm.wait_for(k.a, last_store)
    if DIAG3 and phase in (1, 2): stamp(k, D3ID[phase])
    k.e("s_barrier")
    signal(k, phase, s_idx)
    if DIAG3 and phase in (1, 2): stamp(k, D3ID[phase] + 1)


def tile_offsets(k):
    e = k.e
    e("s_mul_i32 s25, s%d, 20480", STTW)
    e("s_lshl_b32 s3, s%d, 11", SCB); e("s_add_u32 s28, s25, s3")
    e("s_lshl_b32 s3, s%d, 9", SCB); e("s_add_u32 s29, s25, s3"); e("s_add_u32 s29, s29, 16384")

def issue_resid(k, vm, xres, RES, BI, bias):
    e = k.e
    last = None
    e("s_add_u32 s17, s28, s%d", xres)
    for p in range(2):
        e("buffer_load_dwordx4 v[%d:%d], v%d, s[4:7], s17 offen offset:%d sc1", RES + 4 * p, RES + 4 * p + 3, VL16, p * 1024); last = vm.issue()
    e("s_add_u32 s17, s29, s%d", xres)
    e("v_lshlrev_b32 v7, 3, v0")
    e("buffer_load_dwordx2 v[%d:%d], v7, s[4:7], s17 offen sc1", RES + 8, RES + 9); last = vm.issue()
    if bias:
        e("v_lshlrev_b32 v7, 3, v%d", VQD)
        e("s_mul_i32 s17, s%d, 160", SCB)
        for T in range(5):
            e("buffer_load_dwordx2 v[%d:%d], v7, s[%d:%d], s17 offen offset:%d", BI + 2 * T, BI + 2 * T + 1, SRD_B2, SRD_B2 + 3, T * 32); last = vm.issue()
    return last

def finish_tile(k, vm, FS, RES, BI, bias, xout, stout, can_be_final, TMPV):
    a, e = k.a, k.e
    OUTP, S1, S2, T1, T2 = TMPV, TMPV + 10, TMPV + 11, TMPV + 12, TMPV + 13
    for T in range(5):
        for h in range(2):
            for src in ([RES] + ([BI] if bias else [])):
                e("v_lshlrev_b32 v%d, 16, v%d", T1, src + 2 * T + h)
                e("v_and_b32 v%d, 0xffff0000, v%d", T2, src + 2 * T + h)
                e("v_pk_add_f32 v[%d:%d], v[%d:%d], v[%d:%d]", FS + T * 4 + 2 * h, FS + T * 4 + 2 * h + 1, FS + T * 4 + 2 * h, FS + T * 4 + 2 * h + 1, T1, T2)
    for T in range(5):
        for h in range(2):
            e("v_cvt_pk_bf16_f32 v%d, v%d, v%d", OUTP + 2 * T + h, FS + T * 4 + 2 * h, FS + T * 4 + 2 * h + 1)
    if can_be_final:
        e("v_mul_u32_u24 v7, 1280, v%d", VLO)
        e("v_lshl_add_u32 v7, v%d, 3, v7", VQD)
        e("s_mul_i32 s17, s%d, %d", STTW, 16 * 1280); e("s_mul_i32 s18, s%d, 160", SCB); e("s_add_u32 s17, s17, s18")
        for T in range(5):
            e("buffer_store_dwordx2 v[%d:%d], v7, s[%d:%d], s17 offen offset:%d", OUTP + 2 * T, OUTP + 2 * T + 1, SRD_OUT, SRD_OUT + 3, T * 32)
        if DIAG: globals()['stamp_flush'](k)
        e("s_endpgm")
        return None
    e("s_add_u32 s17, s28, s%d", xout)
    for p in range(2):
        e("buffer_store_dwordx4 v[%d:%d], v%d, s[4:7], s17 offen offset:%d sc1", OUTP + 4 * p, OUTP + 4 * p + 3, VL16, p * 1024); vm.issue()
    e("s_add_u32 s17, s29, s%d", xout)
    e("v_lshlrev_b32 v7, 3, v0")
    e("buffer_store_dwordx2 v[%d:%d], v7, s[4:7], s17 offen sc1", OUTP + 8, OUTP + 9); vm.issue()
    e("v_pk_add_f32 v[%d:%d], v[%d:%d], v[%d:%d]", T1, T2, FS, FS + 1, FS + 2, FS + 3)
    e("v_pk_mul_f32 v[%d:%d], v[%d:%d], v[%d:%d]", S1, S2, FS, FS + 1, FS, FS + 1)
    e("v_pk_fma_f32 v[%d:%d], v[%d:%d], v[%d:%d], v[%d:%d]", S1, S2, FS + 2, FS + 3, FS + 2, FS + 3, S1, S2)
    for i in range(4, 20, 2):
        e("v_pk_add_f32 v[%d:%d], v[%d:%d], v[%d:%d]", T1, T2, T1, T2, FS + i, FS + i + 1)
        e("v_pk_fma_f32 v[%d:%d], v[%d:%d], v[%d:%d], v[%d:%d]", S1, S2, FS + i, FS + i + 1, FS + i, FS + i + 1, S1, S2)
    e("v_add_f32 v%d, v%d, v%d", S2, S1, S2)
    e("v_add_f32 v%d, v%d, v%d", S1, T1, T2)
    e("v_permlane16_swap_b32 v%d, v%d", S1, S2)
    e("v_add_f32 v%d, v%d, v%d", S1, S1, S2)
    e("v_mov_b32 v%d, v%d", S2, S1)
    e("v_permlane32_swap_b32 v%d, v%d", S1, S2)
    e("v_add_f32 v%d, v%d, v%d", S1, S1, S2)
    e("v_mov_b32 v%d, v%d", S2, S1)
    e("v_permlane16_swap_b32 v%d, v%d", S1, S2)
    e("s_lshl_b32 s17, s%d, 10", STTW); e("s_lshl_b32 s18, s%d, 7", SCB); e("s_add_u32 s17, s17, s18"); e("s_add_u32 s17, s17, s%d", stout)
    e("s_mov_b64 exec, 0xffff")
    e("buffer_store_dwordx2 v[%d:%d], v7, s[4:7], s17 offen sc1", S1, S2); last = vm.issue()
    e("s_mov_b64 exec, -1")
    return last
```

```python
from main_head import *
P = dict(DP3=12, DEP4=6, NT=0, U1=8, U2=16, U3=8, U4=4, D1=12, D2=12, D3=25, D4=12, TCH=1, WB_=10, WE=10, WO_=8, WJ=16, WM=10)
for kv in os.environ.get("TUNE", "").split(","):
    if kv: P[kv.split("=")[0]] = int(kv.split("=")[1])
NT = " nt" if P["NT"] else ""
DIAG2 = int(os.environ.get("DIAG", "0")) == 2

def setup_wq(k, extra=0):
    e = k.e
    e("s_mul_i32 s33, s%d, %d", SM, WQ_J); e("s_add_u32 s33, s33, s%d", SM0); e("s_add_u32 s33, s33, 0x%x", WQ + extra)

SW2 = 62
W2X = 220
def w2_reg(n):
    return ("a", 4 * n) if n < 64 else ("v", W2X + 4 * (n - 64))
def w2_load(k, vm, n):
    i, T = n // 5, n % 5
    c, r = w2_reg(n)
    k.e("s_add_u32 s17, s%d, %d", SW2, i * 4 * 5120 + (T // 4) * 4096)
    k.e("buffer_load_dwordx4 %s[%d:%d], v%d, s[4:7], s17 offen offset:%d%s", c, r, r + 3, VL16, (T % 4) * 1024, NT)
    return vm.issue()
class W2Q:
    def __init__(self): self.n = 0
    def add(self, k, vm, bg, cnt):
        if k.layer != 0: return
        for _ in range(cnt):
            if self.n >= 64: return
            n = self.n; self.n += 1
            bg.add(lambda n=n: w2_load(k, vm, n), True)

VDUM = 253
def touch_items(k, vm, bg, base, blk, half, l0=False):
    if not P["TCH"]: return
    e = k.e
    per = 8 * blk // 128
    n = (per + 2047) // 2048
    def mk(i):
        def f():
            e("s_lshr_b32 s17, s2, 3"); e("s_and_b32 s17, s17, 31"); e("s_lshl_b32 s17, s17, 2"); e("s_add_u32 s17, s17, s%d", SW)
            e("s_mul_i32 s17, s17, %d", per)
            e("s_add_u32 s17, s17, 0x%x", base + i * 2048)
            if half:
                e("s_lshr_b32 s18, s%d, 3", SM); e("s_mul_i32 s18, s18, %d", 8 * blk); e("s_add_u32 s17, s17, s18")
            e("v_lshlrev_b32 v7, 7, v%d", VLO)
            e("buffer_load_dword v%d, v7, s[4:7], s17 offen", VDUM)
            return vm.issue()
        return f
    for i in range(n): bg.add(mk(i), l0)

def phase1(k):
    a, e = k.a, k.e
    w2q = k.w2q
    vm = VM()
    X = 88
    ACCA = 8
    AFR = 48
    STR = 248
    EP, EN, TM = 48, 58, 68
    PK = 48
    VP = 74
    VPH, VPV = 80, 81
    stamp(k, 0)
    if k.layer: wait_cnt(k, 4, SRB, prev_layer=True)
    stamp(k, 1)
    SX0, SX1_ = 21, 22
    e("s_mul_i32 s%d, s%d, 20480", SX0, STT0); e("s_add_u32 s%d, s%d, s%d", SX0, SX0, SXIN)
    e("s_add_u32 s%d, s%d, 20480", SX1_, SX0)
    feed = Feed(vm)
    def xload(kk, tt):
        def f():
            sx = (SX0, SX1_)[tt]
            if kk % 4 == 0 and kk:
                e("s_add_u32 s%d, s%d, 4096", sx, sx)
            return xfrag_load(k, vm, X + (kk * 2 + tt) * 4, sx, kk)
        return f
    for kk in range(20):
        for tt in range(2): feed.add(kk, xload(kk, tt))
    U = P["U1"]
    feed.emit(-1, 4)
    issue_stats(k, vm, SSTIN, STT0, 2, STR)
    feed.emit(-1, 2 * U - 4)
    bg = BG(k, vm)
    wb_last = None
    if k.layer == 0:
        e("s_waitcnt vmcnt(%d)", min(vm.n, 63))
        e("s_barrier")
        q_dma(k, vm, bg, 33, lambda: setup_wq(k, WQ_B), 15, LDS_B)
        wbm = {}
        bg.add(lambda: wbm.setdefault("i", bg.last))
    def hook(kk, n):
        if n in (3, 8):
            if not feed.emit(kk, 1): bg.emit(1)
        if DIAG2 and n == 1 and kk in (0, 4, 9, 14): stamp(k, 23 + (0, 4, 9, 14).index(kk))
    gemm2(k, 20, 5, 2, lambda kk, t: (kk * 5 + t) * 1024, lambda kk, tt: X + (kk * 2 + tt) * 4,
          lambda tt, t: ACCA + tt * 20 + t * 4, AFR, 2, feed.need(a), hook)
    bg.flush()
    if k.layer == 0: wb_last = wbm["i"]
    stamp(k, 2)
    e("s_barrier")
    e("v_lshrrev_b32 v%d, 1, v%d", TM, VQD)
    e("v_and_b32 v%d, 1, v%d", TM + 1, VQD)
    e("s_lshl_b32 s17, s%d, 5", SW)
    e("v_lshl_add_u32 v%d, v%d, 7, v%d", TM, TM, VLO)
    e("v_add_u32 v%d, s17, v%d", TM, TM)
    e("v_mul_u32_u24 v%d, 160, v%d", TM, TM)
    e("v_mul_u32_u24 v%d, 48, v%d", VPH, TM + 1); e("v_add_u32 v%d, v%d, v%d", VPH, VPH, TM)
    e("v_mul_u32_u24 v%d, 24, v%d", VPV, TM + 1); e("v_add_u32 v%d, v%d, v%d", VPV, VPV, TM)
    e("v_add_u32 v%d, 96, v%d", VPV, VPV)
    e("v_mov_b32 v%d, 0x3f80", VP + 5)
    Rr = lambda tt: STR + 4 * tt + 2
    Cc = lambda tt: STR + 4 * tt
    for tt in range(2):
        stats_finish(k, STR + 4 * tt, Rr(tt), TM, False)
        e("v_mul_f32 v%d, 0x%x, v%d", Cc(tt), f32bits(LOG2E), Rr(tt))
    touch_items(k, vm, bg, WO, 102400, False)
    k.bg = bg; k.period = 400; k.acc = 400
    for tt in range(2):
        A0 = ACCA + tt * 20
        softmax_pm(k, A0, Cc(tt), PK, EP, EN, TM)
        e("v_mov_b32 v%d, 0", PK + 10); e("v_mov_b32 v%d, 0", PK + 11)
        R = Rr(tt)
        for i in range(5):
            e("v_pk_mul_f32 v[%d:%d], v[%d:%d], v[%d:%d] op_sel_hi:[1,0]", A0 + 10 + 2 * i, A0 + 11 + 2 * i, A0 + 10 + 2 * i, A0 + 11 + 2 * i, R, R + 1)
        for i in range(5):
            e("v_cvt_pk_bf16_f32 v%d, v%d, v%d", VP + i, A0 + 10 + 2 * i, A0 + 11 + 2 * i)
        for g in range(3):
            e("ds_write_b128 v%d, v[%d:%d] offset:%d", VPH, PK + 4 * g, PK + 4 * g + 3, tt * 16 * 160 + g * 16)
        for g in range(3):
            e("ds_write_b64 v%d, v[%d:%d] offset:%d", VPV, VP + 2 * g, VP + 2 * g + 1, tt * 16 * 160 + g * 8)
    k.bg = None
    bg.flush()
    VTA, VTB = 84, 85
    T0, T1 = TM, TM + 1
    e("v_lshrrev_b32 v%d, 2, v%d", T0, VLO)
    e("v_lshl_add_u32 v%d, v%d, 2, v%d", T0, VQD, T0)
    e("s_lshr_b32 s17, s%d, 1", SW); e("s_lshl_b32 s17, s17, 7")
    e("v_add_u32 v%d, s17, v%d", T0, T0)
    e("v_mul_u32_u24 v%d, 160, v%d", VTB, T0)
    e("v_and_b32 v%d, 3, v%d", T1, VLO)
    e("v_lshl_add_u32 v%d, v%d, 3, v%d", VTB, T1, VTB)
    e("s_and_b32 s19, s%d, 1", SW)
    e("s_lshl_b32 s17, s19, 5"); e("s_add_u32 s17, s17, 96")
    e("v_add_u32 v%d, s17, v%d", VTA, VTB)
    VA0, VA3 = 86, 87
    e("v_mov_b32 v%d, 0x%x", T1, OOB)
    e("v_lshlrev_b32 v%d, 2, v0", VA0)
    e("s_cmp_eq_u32 s19, 1"); e("s_cselect_b32 s18, 2, 4")
    e("v_cmp_gt_u32 vcc, s18, v%d", VQD)
    e("v_cndmask_b32 v%d, v%d, v%d, vcc", VA0, T1, VA0)
    e("s_sub_u32 s18, 2, s19")
    e("v_cmp_ne_u32 vcc, s18, v%d", VQD)
    e("v_cndmask_b32 v%d, v%d, v%d, vcc", VA3, T1, VA0)
    e("s_lshl_b32 s17, s%d, 1", SM); e("s_lshr_b32 s3, s%d, 1", SW); e("s_add_u32 s17, s17, s3")
    e("s_mul_i32 s17, s17, %d", KV_HEAD); e("s_mul_i32 s3, s19, 3072"); e("s_add_u32 s17, s17, s3"); e("s_add_u32 s23, s17, s%d", SKV)
    e("s_waitcnt lgkmcnt(0)")
    e("s_barrier")
    stamp(k, 3)
    KC = 8
    TA = 20
    TB = 36
    for ks in range(4):
        for hf in range(2):
            e("ds_read_b64_tr_b16 v[%d:%d], v%d offset:%d", TA + ks * 4 + hf * 2, TA + ks * 4 + hf * 2 + 1, VTA, (32 * ks + 16 * hf) * 160)
        for b in range(3):
            for hf in range(2):
                r = TB + (ks * 3 + b) * 4 + hf * 2
                e("ds_read_b64_tr_b16 v[%d:%d], v%d offset:%d", r, r + 1, VTB, (32 * ks + 16 * hf) * 160 + 32 * b)
    for ks in range(4):
        e("s_waitcnt lgkmcnt(%d)", min(15, 8 * (3 - ks)))
        for b in range(3):
            r = TB + (ks * 3 + b) * 4
            c = KC + 4 * b
            e("v_mfma_f32_16x16x32_bf16 v[%d:%d], v[%d:%d], v[%d:%d], %s", c, c + 3, TA + 4 * ks, TA + 4 * ks + 3, r, r + 3, "0" if ks == 0 else "v[%d:%d]" % (c, c + 3))
    at_last = None
    for b in range(3):
        for r in range(4):
            e("buffer_atomic_add_f32 v%d, v%d, s[4:7], s23 offen offset:%d", KC + 4 * b + r, VA3 if r == 3 else VA0, b * 1024 + r * 256); at_last = vm.issue()
    if k.layer == 0:
        vm.wait_for(a, wb_last)
        e("s_barrier")
    stamp(k, 4)
    ACCB = 20
    AFRB = 44
    bgt = BG(k, vm)
    touch_items(k, vm, bgt, W1, 143360, True)
    w2q.add(k, vm, bg, P["WB_"])
    def hookB(kk, n):
        if n == 3 and kk % 2 == 1: bg.emit(1)
        if n == 3 and kk in (0, 6, 12, 18): bgt.emit(1)
    gemm2(k, 20, 3, 2, lambda kk, t: LDS_B + (kk * 3 + t) * 1024, lambda kk, tt: X + (kk * 2 + tt) * 4,
          lambda tt, t: ACCB + tt * 12 + t * 4, AFRB, 3, None, hookB)
    bg.flush()
    stamp(k, 5)
    vm.wait_for(a, at_last)
    e("s_barrier")
    signal(k, 0, SM)
    EP, EN, TM = 88, 98, 108
    T0, T1 = TM, TM + 1
    PQ = 136
    for i in (PQ + 10, PQ + 11, PQ + 22, PQ + 23): e("v_mov_b32 v%d, 0", i)
    bgt.flush()
    w2q.add(k, vm, bg, P["WE"])
    k.bg = bg; k.period = 128; k.acc = 0
    for tt in range(2):
        softmax_pm(k, ACCB + tt * 12, Cc(tt), PQ + 12 * tt, EP, EN, TM)
    k.bg = None
    bg.flush()
    VK0 = 160
    e("v_lshrrev_b32 v%d, 2, v%d", T0, VLO)
    e("v_and_b32 v%d, 3, v%d", T1, VLO)
    e("v_lshrrev_b32 v%d, 1, v%d", TM + 2, T0)
    e("v_mul_u32_u24 v%d, %d, v%d", TM + 4, KV_HEAD, TM + 2)
    e("v_lshl_add_u32 v%d, v%d, 8, v%d", TM + 4, T1, TM + 4)
    e("v_lshrrev_b32 v%d, 1, v%d", TM + 3, VQD)
    e("v_mov_b32 v%d, 0x%x", T1, OOB)
    e("v_cmp_eq_u32 vcc, v%d, v%d", TM + 2, TM + 3)
    e("v_cndmask_b32 v%d, v%d, v%d, vcc", TM + 4, T1, TM + 4)
    e("v_and_b32 v%d, 1, v%d", TM + 2, T0)
    e("v_and_b32 v%d, 1, v%d", TM + 3, VQD)
    e("s_mul_i32 s20, s%d, %d", SM, 2 * KV_HEAD); e("s_add_u32 s20, s20, s%d", SKV)
    OSC = LDS_B + 50 * 1024
    for i in range(3):
        e("s_add_u32 s3, s%d, %d", SW, 4 * i); e("s_min_u32 s3, s3, 8")
        e("s_mul_i32 s35, s3, 43"); e("s_lshr_b32 s35, s35, 7")
        e("s_mul_i32 s27, s35, 3"); e("s_sub_u32 s27, s3, s27")
        e("s_lshl_b32 s%d, s3, 10", 24 + i); e("s_add_u32 s%d, s%d, %d", 24 + i, 24 + i, OSC)
        e("s_lshl_b32 s28, s35, 6")
        e("s_add_u32 s35, s35, 3"); e("s_lshr_b32 s29, s35, 2"); e("s_mul_i32 s29, s29, 3072"); e("s_and_b32 s35, s35, 3"); e("s_lshl_b32 s35, s35, 6"); e("s_add_u32 s29, s29, s35")
        e("s_sub_u32 s29, s29, s28")
        e("v_mul_u32_u24 v%d, s29, v%d", VK0 + i, TM + 2)
        e("v_add3_u32 v%d, v%d, s28, v%d", VK0 + i, VK0 + i, TM + 4)
        e("s_lshr_b32 s28, s27, 1"); e("s_lshl_b32 s28, s28, 10"); e("s_and_b32 s35, s27, 1"); e("s_lshl_b32 s35, s35, 5"); e("s_add_u32 s28, s28, s35")
        e("s_add_u32 s27, s27, 3"); e("s_lshr_b32 s29, s27, 1"); e("s_lshl_b32 s29, s29, 10"); e("s_and_b32 s35, s27, 1"); e("s_lshl_b32 s35, s35, 5"); e("s_add_u32 s29, s29, s35")
        e("s_sub_u32 s29, s29, s28")
        e("v_mul_u32_u24 v%d, s29, v%d", TM + 5, TM + 3)
        e("v_add3_u32 v%d, v%d, s28, v%d", TM + 5, TM + 5, VK0 + i)
        e("v_mov_b32 v%d, v%d", VK0 + i, TM + 5)
    e("s_mov_b32 s93, s20")
    e("s_mul_i32 s20, s%d, 20480", STT0); e("s_add_u32 s20, s20, s%d", SO)
    e("s_lshl_b32 s3, s%d, 10", SM); e("s_add_u32 s21, s20, s3")
    e("s_lshl_b32 s3, s%d, 8", SM); e("s_add_u32 s22, s20, s3"); e("s_add_u32 s22, s22, 16384")
    stamp(k, 6)
    wait_cnt(k, 0, SM)
    stamp(k, 7)
    vm = VM(); bg = BG(k, vm)
    KR = 168
    for i in range(3):
        e("buffer_load_dwordx4 v[%d:%d], v%d, s[4:7], s93 offen sc1", KR + 8 * i, KR + 8 * i + 3, VK0 + i); vm.issue()
        e("buffer_load_dwordx4 v[%d:%d], v%d, s[4:7], s93 offen offset:16 sc1", KR + 8 * i + 4, KR + 8 * i + 7, VK0 + i); vm.issue()
    w2q.add(k, vm, bg, P["WO_"])
    bg.flush()
    for i in range(3):
        e("v_add_u32 v7, s%d, v%d", 24 + i, VL16)
        vm.wait_for(a, 2 * i + 1)
        for q in range(4):
            e("v_cvt_pk_bf16_f32 v%d, v%d, v%d", KR + 8 * i + q, KR + 8 * i + 2 * q, KR + 8 * i + 2 * q + 1)
        e("ds_write_b128 v7, v[%d:%d]", KR + 8 * i, KR + 8 * i + 3)
    e("s_waitcnt lgkmcnt(0)")
    e("s_barrier")
    KA_ = 192
    for f in (0, 3, 6, 1, 4, 7, 2, 5, 8):
        base, off = lds_addr(OSC + f * 1024)
        e("ds_read_b128 v[%d:%d], v%d offset:%d", KA_ + 4 * f, KA_ + 4 * f + 3, base, off)
    OC_ = 8
    for s in range(3):
        e("s_waitcnt lgkmcnt(%d)", 6 - 3 * s)
        for tt in range(2):
            for t in range(3):
                c = OC_ + tt * 12 + t * 4
                ka = KA_ + (t * 3 + s) * 4
                pb = PQ + 12 * tt + 4 * s
                e("v_mfma_f32_16x16x32_bf16 v[%d:%d], v[%d:%d], v[%d:%d], %s", c, c + 3, ka, ka + 3, pb, pb + 3, "0" if s == 0 else "v[%d:%d]" % (c, c + 3))
    OP = 32
    last = None
    for tt in range(2):
        c = OC_ + tt * 12
        e("v_add_f32 v%d, 0x%x, v%d", TM, f32bits(1e-6), c + 10)
        e("v_rcp_f32 v%d, v%d", TM, TM)
        for i in range(5):
            e("v_pk_mul_f32 v[%d:%d], v[%d:%d], v[%d:%d] op_sel_hi:[1,0]", c + 2 * i, c + 2 * i + 1, c + 2 * i, c + 2 * i + 1, TM, TM + 1)
        for i in range(5):
            e("v_cvt_pk_bf16_f32 v%d, v%d, v%d", OP + 6 * tt + i, c + 2 * i, c + 2 * i + 1)
        if tt:
            e("s_add_u32 s21, s21, 20480"); e("s_add_u32 s22, s22, 20480")
        e("buffer_store_dwordx4 v[%d:%d], v%d, s[4:7], s21 offen sc1", OP + 6 * tt, OP + 6 * tt + 3, VL16); vm.issue()
        e("v_lshlrev_b32 v7, 2, v0")
        e("buffer_store_dword v%d, v7, s[4:7], s22 offen sc1", OP + 6 * tt + 4); last = vm.issue()
    stamp(k, 8)
    def su_wo():
        e("s_mul_i32 s33, s%d, %d", SCB, 100 * 1024); e("s_add_u32 s33, s33, s%d", SM0); e("s_add_u32 s33, s33, 0x%x", WO)
    q_dma(k, vm, bg, 33, su_wo, 25, 0)
    w2q.add(k, vm, bg, P["WJ"])
    bg.emit(P["D1"])
    tile_offsets(k)
    drain_and_signal(k, vm, last, 1, SRB)
    bg.flush()
    stamp(k, 9)

def phase2(k):
    a, e = k.a, k.e
    RES = 8
    FS = 20
    OF_ = 40
    TMPV = 120
    AFR = 136
    vm = VM()
    e("s_mul_i32 s20, s%d, 20480", STTW); e("s_add_u32 s20, s20, s%d", SO)
    res_last = issue_resid(k, vm, SXIN, RES, None, False)
    wait_cnt(k, 1, SRB)
    stamp(k, 10)
    vm = VM()
    feed = Feed(vm)
    def oload(kk):
        def f():
            if kk and kk % 4 == 0: e("s_add_u32 s20, s20, 4096")
            if kk < 16:
                e("buffer_load_dwordx4 v[%d:%d], v%d, s[4:7], s20 offen offset:%d sc1", OF_ + 4 * kk, OF_ + 4 * kk + 3, VL16, (kk % 4) * 1024)
                return vm.issue()
            e("v_lshlrev_b32 v7, 2, v0")
            for q in range(4):
                e("buffer_load_dword v%d, v7, s[4:7], s20 offen offset:%d sc1", OF_ + 4 * kk + q, (4 * (kk - 16) + q) * 256 - (kk - 16) // 4 * 0); last = vm.issue()
            return last
        return f
    for kk in range(20): feed.add(kk, oload(kk))
    feed.emit(-1, P["U2"])
    def hook(kk, n):
        if n == 2: feed.emit(kk, 1)
    gemm2(k, 20, 5, 1, lambda kk, t: (kk * 5 + t) * 1024, lambda kk, tt: OF_ + 4 * kk, lambda tt, t: FS + 4 * t, AFR, 3, feed.need(a), hook)
    stamp(k, 11)
    last = finish_tile(k, vm, FS, RES, None, False, SX1, SST1, False, TMPV)
    stamp(k, 12)
    bg = BG(k, vm)
    def su_w1():
        e("s_mul_i32 s34, s%d, 143360", SM); e("s_add_u32 s34, s34, s%d", SM0); e("s_add_u32 s34, s34, 0x%x", W1)
    q_dma(k, vm, bg, 34, su_w1, 12, LDS_B)
    def p48():
        e("s_mov_b32 m0, %d", LDS_B + 48 * 1024)
        e("s_sub_u32 s17, s34, s%d", SM0); e("s_add_u32 s17, s17, %d", 48 * 1024)
        e("buffer_load_dwordx4 v%d, s[4:7], s17 offen lds", VL16); return vm.issue()
    bg.add(p48)
    q_dma(k, vm, bg, 34, None, 23, 0, goff0=49 * 1024)
    k.w2q.add(k, vm, bg, P["WM"])
    assert P["D2"] <= 13
    bg.emit(P["D2"])
    drain_and_signal(k, vm, last, 2, SRB)
    bg.flush()
    stamp(k, 13)

def w1_lds(kk, t):
    return LDS_B + (kk * 7 + t) * 1024 if kk < 7 else ((kk - 7) * 7 + t) * 1024

def phase3(k):
    a, e = k.a, k.e
    w2q = k.w2q
    ACC = 8
    STR = 64
    BIR = 72
    AFR = 88
    XR = 144
    DP = P["DP3"]
    assert XR + DP * 8 <= 248
    BF = 88
    RS = 116
    TM = 120
    X = 128
    PKD = 136
    KC0, KC1 = 164, 166
    VOB = 168
    STBASE = 26
    vm = VM()
    e("s_and_b32 s17, s%d, 7", SM); e("s_mul_i32 s%d, s17, 7", STBASE)
    e("s_cmp_eq_u32 s17, 7"); e("s_cselect_b32 s%d, 48, s%d", STBASE, STBASE)
    e("s_lshr_b32 s3, s%d, 3", SM); e("s_mul_i32 s3, s3, 54"); e("s_add_u32 s%d, s%d, s3", STBASE, STBASE)
    e("v_lshlrev_b32 v7, 3, v%d", VQD)
    e("s_lshl_b32 s17, s%d, 5", STBASE)
    for t in range(7):
        e("buffer_load_dwordx2 v[%d:%d], v7, s[%d:%d], s17 offen offset:%d", BIR + 2 * t, BIR + 2 * t + 1, SRD_B1, SRD_B1 + 3, t * 32)
    SX0, SX1_ = 21, 22
    e("s_mul_i32 s%d, s%d, 20480", SX0, STT0); e("s_add_u32 s%d, s%d, s%d", SX0, SX0, SX1)
    e("s_add_u32 s%d, s%d, 20480", SX1_, SX0)
    wait_cnt(k, 2, SRB)
    stamp(k, 14)
    vm = VM()
    xreg = lambda kk, tt: XR + (kk % DP) * 8 + tt * 4
    feed = Feed(vm, ring=DP)
    def xload(kk, tt):
        def f():
            sx = (SX0, SX1_)[tt]
            if kk % 4 == 0 and kk:
                e("s_add_u32 s%d, s%d, 4096", sx, sx)
            return xfrag_load(k, vm, xreg(kk, tt), sx, kk)
        return f
    for kk in range(20):
        for tt in range(2): feed.add(kk, xload(kk, tt))
    feed.emit(-1, 4)
    issue_stats(k, vm, SST1, STT0, 2, STR)
    feed.emit(-1, 2 * P["U3"] - 4)
    bg = BG(k, vm)
    w2q.add(k, vm, bg, 64)
    bgt = BG(k, vm)
    touch_items(k, vm, bgt, WQ, WQ_J, True, l0=True)
    def hook(kk, n):
        if n in (4, 11):
            if not feed.emit(kk, 1) and not feed.q: bg.emit(1)
        if n == 7 and kk in (13, 16, 19): bgt.emit(1)
        if DIAG2 and n == 1 and kk in (0, 4, 9, 14): stamp(k, 27 + (0, 4, 9, 14).index(kk))
    gemm2(k, 20, 7, 2, w1_lds, xreg, lambda tt, t: ACC + tt * 28 + t * 4, AFR, 2, feed.need(a), hook)
    bg.flush()
    stamp(k, 15)
    for t in range(7):
        for h in range(2):
            e("v_lshlrev_b32 v%d, 16, v%d", BF + 4 * t + 2 * h, BIR + 2 * t + h)
            e("v_and_b32 v%d, 0xffff0000, v%d", BF + 4 * t + 2 * h + 1, BIR + 2 * t + h)
    K0 = -2.0 * LOG2E * 0.7978845608028654
    K1 = K0 * 0.044715
    e("v_mov_b32 v%d, 0x%x", KC0, f32bits(K0)); e("v_mov_b32 v%d, 0x%x", KC1, f32bits(K1))
    for tt in range(2): stats_finish(k, STR + 4 * tt, RS + 2 * tt, TM, True)
    bgt.flush()
    SHh = 21
    last = None
    e("s_and_b32 s17, s%d, 7", SM); e("s_cmp_ge_u32 s17, 6"); e("s_cselect_b32 s18, 0x%x, 0", OOB)
    e("v_lshlrev_b32 v%d, 3, v0", VOB); e("v_add_u32 v%d, s18, v%d", VOB, VOB)
    SHx = 22
    e("s_lshl_b32 s17, s17, 9"); e("s_lshr_b32 s18, s%d, 3", SM); e("s_mul_i32 s18, s18, 3072"); e("s_add_u32 s17, s17, s18")
    e("s_mul_i32 s18, s%d, 3072", SM); e("s_sub_u32 s%d, s17, s18", SHx); e("s_add_u32 s%d, s%d, %d", SHx, SHx, 48 * 1024)
    for tt in range(2):
        A0 = ACC + tt * 28
        R = RS + 2 * tt
        Pk = PKD + 14 * tt
        e("s_add_u32 s%d, s%d, %d", SHh, STT0, tt); e("s_mul_i32 s%d, s%d, %d", SHh, SHh, 54 * 1024); e("s_add_u32 s%d, s%d, s%d", SHh, SHh, SH)
        e("s_mul_i32 s17, s%d, 3072", SM); e("s_add_u32 s%d, s%d, s17", SHh, SHh)
        for t in range(7):
            x0 = A0 + 4 * t
            for h in range(2):
                x = x0 + 2 * h
                e("v_pk_fma_f32 v[%d:%d], v[%d:%d], v[%d:%d], v[%d:%d] op_sel_hi:[1,0,1]", x, x + 1, x, x + 1, R, R + 1, BF + 4 * t + 2 * h, BF + 4 * t + 2 * h + 1)
            for h in range(2):
                x = x0 + 2 * h
                e("v_pk_mul_f32 v[%d:%d], v[%d:%d], v[%d:%d]", X + 2 * h, X + 2 * h + 1, x, x + 1, x, x + 1)
            for h in range(2):
                e("v_pk_fma_f32 v[%d:%d], v[%d:%d], v[%d:%d], v[%d:%d] op_sel_hi:[1,0,0]", X + 2 * h, X + 2 * h + 1, X + 2 * h, X + 2 * h + 1, KC1, KC1 + 1, KC0, KC0 + 1)
            for h in range(2):
                x = x0 + 2 * h
                e("v_pk_mul_f32 v[%d:%d], v[%d:%d], v[%d:%d]", X + 2 * h, X + 2 * h + 1, X + 2 * h, X + 2 * h + 1, x, x + 1)
            for q in range(4): e("v_exp_f32 v%d, v%d", X + q, X + q)
            for h in range(2):
                e("v_pk_add_f32 v[%d:%d], v[%d:%d], 1.0 op_sel_hi:[1,0]", X + 2 * h, X + 2 * h + 1, X + 2 * h, X + 2 * h + 1)
            for q in range(4): e("v_rcp_f32 v%d, v%d", X + q, X + q)
            for h in range(2):
                x = x0 + 2 * h
                e("v_pk_mul_f32 v[%d:%d], v[%d:%d], v[%d:%d]", X + 2 * h, X + 2 * h + 1, X + 2 * h, X + 2 * h + 1, x, x + 1)
            e("v_cvt_pk_bf16_f32 v%d, v%d, v%d", Pk + 2 * t, X, X + 1)
            e("v_cvt_pk_bf16_f32 v%d, v%d, v%d", Pk + 2 * t + 1, X + 2, X + 3)
            if t in (1, 3, 5):
                e("buffer_store_dwordx4 v[%d:%d], v%d, s[4:7], s%d offen offset:%d sc1", Pk + 2 * t - 2, Pk + 2 * t + 1, VL16, SHh, (t // 2) * 1024); last = vm.issue()
            elif t == 6:
                e("s_add_u32 s17, s%d, s%d", SHh, SHx)
                e("buffer_store_dwordx2 v[%d:%d], v%d, s[4:7], s17 offen sc1", Pk + 12, Pk + 13, VOB); last = vm.issue()
    tick(k, 0)
    stamp(k, 16)
    bg = BG(k, vm)
    if k.layer == 0:
        e("s_barrier")
        q_dma(k, vm, bg, 33, lambda: setup_wq(k), 25, 0)
        bg.emit(P["D3"])
    tile_offsets(k)
    drain_and_signal(k, vm, last, 3, SRB)
    bg.flush()
    stamp(k, 17)

def phase4(k):
    a, e = k.a, k.e
    ACC = 8
    DEP = P["DEP4"]
    HR = 88
    RES = HR + DEP * 16
    BI = RES + 10
    TMPV = BI + 10
    assert TMPV + 14 <= W2X
    RD = 88
    NI = 14
    vm = VM()
    for i in range(4):
        e("s_add_u32 s17, s%d, %d", SW, i); e("s_and_b32 s17, s17, 3")
        e("s_lshl_b32 s18, s%d, 2", STB); e("s_add_u32 s17, s17, s18")
        e("s_mul_i32 s17, s17, %d", 54 * 1024); e("s_add_u32 s17, s17, s%d", SH)
        e("s_add_u32 s%d, s17, s%d", 20 + i, SM0)
    e("s_cmp_lt_u32 s%d, 2", SW); e("s_cselect_b32 s24, 0, 4096")
    for n in range(64, 70): w2_load(k, vm, n)
    issue_resid(k, vm, SX1, RES, BI, True)
    wait_cnt(k, 3, SRB)
    stamp(k, 18)
    vm = VM()
    feed = Feed(vm, ring=DEP)
    def hload(i, sl):
        def f():
            b = HR + ((i % DEP) * 4 + sl) * 4
            e("s_add_u32 s17, s%d, %d", 20 + sl, i * 4096)
            if i == NI - 1: e("s_sub_u32 s17, s17, s24")
            if i < 12:
                e("buffer_load_dwordx4 v[%d:%d], v%d, s[4:7], s17 offen sc1", b, b + 3, VL16)
                return vm.issue()
            e("v_lshlrev_b32 v7, 3, v0")
            e("buffer_load_dwordx2 v[%d:%d], v7, s[4:7], s17 offen sc1", b, b + 1); vm.issue()
            e("buffer_load_dwordx2 v[%d:%d], v7, s[4:7], s17 offen offset:512 sc1", b + 2, b + 3)
            return vm.issue()
        return f
    for i in range(NI):
        for sl in range(4): feed.add(i, hload(i, sl))
    feed.emit(-1, 4 * P["U4"])
    need = feed.need(a)
    for i in range(NI):
        need(i, "")
        n = 0
        for T in range(5):
            for sl in range(4):
                c = ACC + (sl * 5 + T) * 4
                wc, w = w2_reg(i * 5 + T)
                h = HR + ((i % DEP) * 4 + sl) * 4
                e("v_mfma_f32_16x16x32_bf16 v[%d:%d], %s[%d:%d], v[%d:%d], %s", c, c + 3, wc, w, w + 3, h, h + 3, "0" if i == 0 else "v[%d:%d]" % (c, c + 3))
                n += 1
                if n in (2, 7, 12, 17): feed.emit(i, 1)
    stamp(k, 19)
    for sl in range(1, 4):
        e("s_add_u32 s17, s%d, %d", SW, sl); e("s_and_b32 s17, s17, 3"); e("s_mul_i32 s17, s17, 15360")
        e("s_add_u32 s17, s17, %d", LDS_B + (sl - 1) * 5120)
        e("v_add_u32 v7, s17, v%d", VL16)
        for T in range(5):
            r = ACC + (sl * 5 + T) * 4
            e("ds_write_b128 v7, v[%d:%d] offset:%d", r, r + 3, T * 1024)
    e("s_mul_i32 s17, s%d, 15360", SW); e("s_add_u32 s17, s17, %d", LDS_B)
    e("v_add_u32 v7, s17, v%d", VL16)
    e("s_waitcnt lgkmcnt(0)")
    e("s_barrier")
    for n in range(15):
        e("ds_read_b128 v[%d:%d], v7 offset:%d", RD + 4 * n, RD + 4 * n + 3, n * 1024)
    for s in range(3):
        e("s_waitcnt lgkmcnt(%d)", 5 * (2 - s))
        for i in range(0, 20, 2):
            e("v_pk_add_f32 v[%d:%d], v[%d:%d], v[%d:%d]", ACC + i, ACC + i + 1, ACC + i, ACC + i + 1, RD + s * 20 + i, RD + s * 20 + i + 1)
    stamp(k, 20)
    last = finish_tile(k, vm, ACC, RES, BI, True, SX2, SST2, k.layer == 1, TMPV)
    if k.layer == 1: return
    stamp(k, 21)
    e("s_barrier")
    setup_wq(k, WQ_B)
    for i in range(P["D4"]): dma(k, vm, 33, i * 4096, LDS_B + i * 4096)
    drain_and_signal(k, vm, last, 4, SRB)
    for i in range(P["D4"], 15): dma(k, vm, 33, i * 4096, LDS_B + i * 4096)
    stamp(k, 22)

def stamp_flush(k):
    e = k.e
    e("s_waitcnt vmcnt(0)")
    e("s_lshl_b32 s17, s2, 2"); e("s_add_u32 s17, s17, s%d", SW); e("s_lshl_b32 s17, s17, 8"); e("s_add_u32 s17, s17, 0x%x", STAMP)
    e("v_lshlrev_b32 v7, 2, v0")
    e("buffer_store_dword v%d, v7, s[4:7], s17 offen", VSTAMP)
import main_head
main_head.stamp_flush = stamp_flush

def gen_main(a, name="main_kernel"):
    k = K(a, name); e = a.e
    k.bg = None; k.layer = 0
    k.w2q = W2Q()
    kernel_begin(a, name)
    e("s_cmp_ge_u32 s2, 256"); e("s_cbranch_scc0 %s_go", name)
    e("s_endpgm")
    a.label(name + "_go")
    e("s_load_dwordx2 s[22:23], s[0:1], 88")
    e("s_load_dwordx2 s[24:25], s[0:1], 48")
    e("s_load_dwordx2 s[26:27], s[0:1], 64")
    e("s_load_dwordx2 s[28:29], s[0:1], 72")
    code_prefetch(a, None, name + "_end", 248, 16)
    e("v_lshrrev_b32 v6, 6, v0")
    e("v_and_b32 v0, 63, v0")
    e("v_readfirstlane_b32 s%d, v6", SW)
    e("v_lshlrev_b32 v%d, 4, v0", VL16)
    e("v_add_u32 v%d, 0x10000, v%d", VL16B, VL16)
    e("v_add_u32 v%d, 0x20000, v%d", VL16C, VL16)
    e("v_and_b32 v%d, 15, v0", VLO)
    e("v_lshrrev_b32 v%d, 4, v0", VQD)
    if DIAG: e("v_mov_b32 v%d, 0", VSTAMP)
    e("s_and_b32 s17, s2, 7"); e("s_lshr_b32 s18, s2, 3")
    e("s_lshr_b32 s19, s17, 1"); e("s_and_b32 s17, s17, 1")
    e("s_lshl_b32 s19, s19, 2"); e("s_and_b32 s3, s18, 3"); e("s_add_u32 s%d, s19, s3", SRB)
    e("s_lshr_b32 s%d, s18, 2", SCB)
    e("s_lshl_b32 s3, s17, 3"); e("s_add_u32 s%d, s3, s%d", SM, SCB)
    e("s_lshl_b32 s3, s%d, 1", SRB); e("s_add_u32 s%d, s3, s17", STB)
    e("s_lshl_b32 s%d, s%d, 3", STT0, SRB); e("s_lshl_b32 s3, s%d, 1", SW); e("s_add_u32 s%d, s%d, s3", STT0, STT0)
    e("s_lshl_b32 s%d, s%d, 2", STTW, STB); e("s_add_u32 s%d, s%d, s%d", STTW, STTW, SW)
    e("s_lshl_b32 s%d, s%d, 10", SM0, SW)
    e("s_mov_b32 s%d, 0", SAB)
    e("s_mul_i32 s%d, s%d, 286720", SW2, SCB); e("s_mul_i32 s17, s%d, 5120", SW); e("s_add_u32 s%d, s%d, s17", SW2, SW2); e("s_add_u32 s%d, s%d, 0x%x", SW2, SW2, W2)
    e("s_waitcnt lgkmcnt(0)")
    make_srd(a, 4, 22, WS_REC)
    make_srd(a, SRD_B1, 24, F * 2)
    make_srd(a, SRD_B2, 26, D * 2)
    make_srd(a, SRD_OUT, 28, S * D * 2)
    vm0 = VM()
    setup_wq(k)
    for i in range(25): dma(k, vm0, 33, i * 4096, i * 4096)
    for layer in range(2):
        k.layer = layer
        e("s_mov_b32 s%d, 0x%x", SXIN, XF[2 * layer]); e("s_mov_b32 s%d, 0x%x", SX1, XF[2 * layer + 1]); e("s_mov_b32 s%d, 0x%x", SX2, XF[2 * layer + 2 - 2 * layer * 0] if layer == 0 else XF[3])
        e("s_mov_b32 s%d, 0x%x", SSTIN, ST[2 * layer]); e("s_mov_b32 s%d, 0x%x", SST1, ST[2 * layer + 1]); e("s_mov_b32 s%d, 0x%x", SST2, ST[2] if layer == 0 else ST[3])
        e("s_mov_b32 s%d, 0x%x", SO, OB[layer]); e("s_mov_b32 s%d, 0x%x", SH, HB[layer]); e("s_mov_b32 s%d, 0x%x", SKV, KV[layer])
        e("s_mov_b32 s%d, 0x%x", SCNT, CNT + layer * 5 * 2048)
        phase1(k)
        phase2(k)
        phase3(k)
        phase4(k)
    assert k.w2q.n == 64
    a.label(name + "_end")
    e("s_endpgm")
    return dict(name=name, grid=256, block=256, lds=163840, vgpr=512, accum=256)
```

```python
from common import *

NA, NB, NC, ND, NE, NF = 96, 64, 144, 48, 128, 8
OA = 0; OB_ = OA + NA; OC = OB_ + NB; OD = OC + NC; OE = OD + ND; OF = OE + NE
PREP_TASKS = OF + NF

def gen_prep(a, name="prep_kernel"):
    kernel_begin(a, name)
    e = a.e
    e("s_cmp_ge_u32 s2, %d", PREP_TASKS); e("s_cbranch_scc1 %s_end", name)
    e("s_load_dwordx4 s[8:11], s[0:1], 0")
    e("s_load_dwordx4 s[12:15], s[0:1], 16")
    e("s_load_dwordx2 s[16:17], s[0:1], 40")
    e("s_load_dwordx2 s[20:21], s[0:1], 56")
    e("s_load_dwordx2 s[22:23], s[0:1], 88")
    VLO, VQD, VL16 = 1, 2, 3
    e("v_and_b32 v%d, 15, v0", VLO)
    e("v_lshrrev_b32 v%d, 4, v0", VQD)
    e("v_lshlrev_b32 v%d, 4, v0", VL16)
    ONES = 4
    for i in range(4): e("v_mov_b32 v%d, 0x3f803f80", ONES + i)
    SEL0, SEL1 = 8, 12
    build_selectors(a, VLO, VQD, SEL0, SEL1, 16, 17)
    e("s_waitcnt lgkmcnt(0)")
    make_srd(a, 4, 22, WS_REC)
    SRC = 24
    e("s_cmp_lt_u32 s2, %d", OB_); e("s_cbranch_scc1 %s_A", name)
    e("s_cmp_lt_u32 s2, %d", OC); e("s_cbranch_scc1 %s_B", name)
    e("s_cmp_lt_u32 s2, %d", OD); e("s_cbranch_scc1 %s_C", name)
    e("s_cmp_lt_u32 s2, %d", OE); e("s_cbranch_scc1 %s_D", name)
    e("s_cmp_lt_u32 s2, %d", OF); e("s_cbranch_scc1 %s_E", name)
    e("s_branch %s_F", name)

    LD = 32
    CC = 192
    FR = 208
    NM = 216
    BF0, BF1 = 224, 228
    TMP = 232
    VA, VD0, VD1 = 20, 21, 22
    T0, T1, T2, T3 = 25, 26, 27, 28

    def mf(c, x, b, srcc):
        e("v_mfma_f32_16x16x32_bf16 v[%d:%d], v[%d:%d], v[%d:%d], %s", c, c + 3, x, x + 3, b, b + 3, srcc)

    def colmean(n, B0, B1):
        for i in range(n):
            lo, hi = LD + 8 * i, LD + 8 * i + 4
            z = "0" if i == 0 else None
            mf(CC, lo, B0, z or "v[%d:%d]" % (CC, CC + 3))
            mf(CC + 4, hi, B0, z or "v[%d:%d]" % (CC + 4, CC + 7))
            mf(CC + 8, lo, B1, z or "v[%d:%d]" % (CC + 8, CC + 11))
            mf(CC + 12, hi, B1, z or "v[%d:%d]" % (CC + 12, CC + 15))
        for f in range(2):
            c = CC + 8 * f
            for i in range(1, 8): e("v_add_f32 v%d, v%d, v%d", c, c, c + i)
            e("v_mov_b32 v%d, v%d", T2, c)
            e("v_permlane32_swap_b32 v%d, v%d", c, T2)
            e("v_add_f32 v%d, v%d, v%d", c, c, T2)
            e("v_mov_b32 v%d, v%d", T2, c)
            e("v_permlane16_swap_b32 v%d, v%d", c, T2)
            e("v_add_f32 v%d, v%d, v%d", c, c, T2)
            e("v_mul_f32 v%d, 0x%x, v%d", NM + 4 * f, f32bits(-1.0 / 640), c)
            for i in range(1, 4): e("v_mov_b32 v%d, v%d", NM + 4 * f + i, NM + 4 * f)

    def unit_body(i, nunits, B0, B1, dst0, dst1, vd0, vd1, center, wait):
        nst = 2 * i
        if wait: e("s_waitcnt vmcnt(%d)", min(2 * (nunits - 1 - i) + nst, 63))
        lo, hi = LD + 8 * i, LD + 8 * i + 4
        c0 = "v[%d:%d]" % (NM, NM + 3) if center else "0"
        c1 = "v[%d:%d]" % (NM + 4, NM + 7) if center else "0"
        mf(CC, lo, B0, c0); mf(CC + 4, hi, B0, c0); mf(CC + 8, lo, B1, c1); mf(CC + 12, hi, B1, c1)
        for f in range(2):
            for q in range(4):
                e("v_cvt_pk_bf16_f32 v%d, v%d, v%d", FR + 4 * f + q, CC + 8 * f + 2 * q, CC + 8 * f + 2 * q + 1)
        e("buffer_store_dwordx4 v[%d:%d], v%d, s[4:7], s%d offen", FR, FR + 3, vd0, dst0)
        e("buffer_store_dwordx4 v[%d:%d], v%d, s[4:7], s%d offen", FR + 4, FR + 7, vd1, dst1)

    a.label(name + "_A")
    e("s_lshr_b32 s32, s2, 5")
    e("s_and_b32 s33, s2, 31")
    make_srd(a, SRC, 10, D * 3 * D * 2)
    e("v_mul_u32_u24 v%d, 3840, v%d", VA, VLO)
    e("v_lshl_add_u32 v%d, v%d, 4, v%d", VA, VQD, VA)
    e("s_mul_i32 s34, s32, 1280")
    e("s_mul_i32 s35, s33, 40"); e("s_add_u32 s34, s34, s35")
    for i in range(20):
        e("s_add_u32 s36, s34, %d", xt(i)[0] * 16 * 3840)
        e("buffer_load_dwordx4 v[%d:%d], v%d, s[%d:%d], s36 offen", LD + 8 * i, LD + 8 * i + 3, VA, SRC, SRC + 3)
        e("s_add_u32 s36, s34, %d", xt(i)[1] * 16 * 3840)
        e("buffer_load_dwordx4 v[%d:%d], v%d, s[%d:%d], s36 offen", LD + 8 * i + 4, LD + 8 * i + 7, VA, SRC, SRC + 3)
    e("s_cmp_eq_u32 s32, 2"); e("s_cbranch_scc1 %s_Av", name)
    PH = 40
    make_srd(a, PH, 12, H * DH * DH * 2)
    e("s_mul_i32 s37, s33, 800")
    e("v_mov_b32 v%d, 0x%x", T3, OOB)
    for ft in range(2):
        for cls in range(2):
            e("v_mul_u32_u24 v%d, 320, v%d", T0, VQD)
            e("v_lshl_add_u32 v%d, v%d, 1, v%d", T0, VLO, T0)
            if ft: e("v_add_u32 v%d, 32, v%d", T0, T0)
            e("v_cmp_gt_u32 vcc, %d, v%d", 3 if cls == 0 else 2, VQD)
            e("v_cndmask_b32 v%d, v%d, v%d, vcc", T0, T3, T0)
            if ft:
                e("v_cmp_gt_u32 vcc, 4, v%d", VLO)
                e("v_cndmask_b32 v%d, v%d, v%d, vcc", T0, T3, T0)
            for ee in range(4):
                el = cls * 4 + ee
                e("buffer_load_ushort v%d, v%d, s[%d:%d], s37 offen offset:%d", TMP + ft * 8 + el, T0, PH, PH + 3, el * 40)
    e("s_waitcnt vmcnt(0)")
    for ft, BF in enumerate((BF0, BF1)):
        for dw in range(4):
            e("v_lshl_or_b32 v%d, v%d, 16, v%d", BF + dw, TMP + ft * 8 + 2 * dw + 1, TMP + ft * 8 + 2 * dw)
    e("s_branch %s_A2", name)
    a.label(name + "_Av")
    e("s_waitcnt vmcnt(0)")
    for dw in range(4):
        e("v_mov_b32 v%d, v%d", BF0 + dw, SEL0 + dw)
        e("v_mov_b32 v%d, v%d", BF1 + dw, SEL1 + dw)
    a.label(name + "_A2")
    a.fence()
    e("s_and_b32 s39, s33, 1"); e("s_lshl_b32 s38, s39, 1")
    e("s_cmp_eq_u32 s32, 2"); e("s_cselect_b32 s37, 10, 0")
    OOBR = 29
    e("v_mov_b32 v%d, 0x%x", OOBR, OOB)
    for ft, vd in ((0, VD0), (1, VD1)):
        e("v_add_u32 v%d, %d, v%d", T1, 16 * ft, VLO)
        e("v_cmp_le_u32 vcc, 10, v%d", T1)
        e("v_cndmask_b32 v%d, 0, 1, vcc", T0)
        e("v_mul_u32_u24 v%d, 10, v%d", T2, T0)
        e("v_sub_u32 v%d, v%d, v%d", T2, T1, T2)
        e("v_add_u32 v%d, s37, v%d", T2, T2)
        e("v_add_u32 v%d, s38, v%d", T0, T0)
        e("v_lshrrev_b32 v%d, 2, v%d", vd, T2)
        e("v_lshlrev_b32 v%d, 10, v%d", vd, vd)
        e("v_and_b32 v%d, 3, v%d", 30, T2)
        e("v_lshl_add_u32 v%d, v%d, 2, v%d", 30, T0, 30)
        e("v_lshl_add_u32 v%d, v%d, 4, v%d", 30, VQD, 30)
        e("v_lshl_add_u32 v%d, v%d, 4, v%d", vd, 30, vd)
        if ft:
            e("v_cmp_gt_u32 vcc, 4, v%d", VLO)
            e("v_cndmask_b32 v%d, v%d, v%d, vcc", vd, OOBR, vd)
    colmean(20, BF0, BF1)
    e("s_lshr_b32 s38, s33, 1")
    e("s_mul_i32 s39, s38, %d", WQ_J); e("s_add_u32 s39, s39, 0x%x", WQ)
    e("s_cmp_eq_u32 s32, 0"); e("s_cselect_b32 s36, %d, 0", WQ_B); e("s_movk_i32 s37, 5120"); e("s_cselect_b32 s37, 3072, s37")
    e("s_add_u32 s36, s36, s39")
    for i in range(20):
        unit_body(i, 20, BF0, BF1, 36, 36, VD0, VD1, True, False)
        e("s_add_u32 s36, s36, s37")
    e("s_endpgm")

    a.label(name + "_B")
    e("s_sub_u32 s30, s2, %d", OB_)
    e("s_lshr_b32 s31, s30, 2")
    e("s_and_b32 s32, s30, 3")
    e("s_and_b32 s34, s31, 7"); e("s_mul_i32 s35, s34, 7")
    e("s_cmp_eq_u32 s34, 7"); e("s_cselect_b32 s35, 48, s35")
    e("s_lshr_b32 s34, s31, 3"); e("s_mul_i32 s34, s34, 54"); e("s_add_u32 s35, s35, s34")
    e("s_lshl_b32 s34, s32, 1"); e("s_add_u32 s35, s35, s34")
    make_srd(a, SRC, 16, D * F * 2)
    e("v_mul_u32_u24 v%d, 3456, v%d", VA, VLO)
    e("v_lshl_add_u32 v%d, v%d, 4, v%d", VA, VQD, VA)
    e("s_lshl_b32 s36, s35, 5")
    for i in range(20):
        e("s_add_u32 s37, s36, %d", xt(i)[0] * 16 * 3456)
        e("buffer_load_dwordx4 v[%d:%d], v%d, s[%d:%d], s37 offen", LD + 8 * i, LD + 8 * i + 3, VA, SRC, SRC + 3)
        e("s_add_u32 s37, s36, %d", xt(i)[1] * 16 * 3456)
        e("buffer_load_dwordx4 v[%d:%d], v%d, s[%d:%d], s37 offen", LD + 8 * i + 4, LD + 8 * i + 7, VA, SRC, SRC + 3)
    e("v_mov_b32 v%d, v%d", VD0, VL16)
    e("s_cmp_eq_u32 s32, 3"); e("s_cselect_b32 s38, 0x%x, 0", OOB)
    e("v_add_u32 v%d, s38, v%d", VD1, VL16)
    e("s_waitcnt vmcnt(0)")
    colmean(20, SEL0, SEL1)
    e("s_mul_i32 s39, s31, 143360")
    e("s_lshl_b32 s40, s32, 11"); e("s_add_u32 s39, s39, s40"); e("s_add_u32 s39, s39, 0x%x", W1)
    for i in range(20):
        e("s_add_u32 s40, s39, %d", i * 7 * 1024)
        e("s_add_u32 s41, s39, %d", i * 7 * 1024 + 1024)
        unit_body(i, 20, SEL0, SEL1, 40, 41, VD0, VD1, True, False)
    e("s_endpgm")

    a.label(name + "_C")
    e("s_sub_u32 s30, s2, %d", OC)
    e("s_mul_hi_u32 s31, s30, 0x2AAAAAAB")
    e("s_mul_i32 s32, s31, 6"); e("s_sub_u32 s33, s30, s32")
    e("s_mul_hi_u32 s34, s31, 0x55555556")
    e("s_mul_i32 s32, s34, 3"); e("s_sub_u32 s32, s31, s32")
    make_srd(a, SRC, 20, F * D * 2)
    e("v_mul_u32_u24 v%d, 1280, v%d", VA, VLO)
    e("v_lshl_add_u32 v%d, v%d, 4, v%d", VA, VQD, VA)
    e("s_mul_i32 s36, s34, 160")
    e("s_lshl_b32 s37, s32, 6"); e("s_add_u32 s36, s36, s37")
    for i in range(9):
        e("s_mul_i32 s40, s33, 9"); e("s_add_u32 s40, s40, %d", i)
        e("s_mul_i32 s41, s40, 43"); e("s_lshr_b32 s41, s41, 7")
        e("s_mul_i32 s42, s41, 3"); e("s_sub_u32 s42, s40, s42")
        e("s_and_b32 s43, s41, 7"); e("s_mul_i32 s43, s43, 7"); e("s_min_u32 s43, s43, 48")
        e("s_lshr_b32 s44, s41, 3"); e("s_mul_i32 s44, s44, 54"); e("s_add_u32 s43, s43, s44")
        e("s_lshl_b32 s44, s42, 1"); e("s_add_u32 s43, s43, s44")
        e("s_sub_u32 s44, s41, 16"); e("s_mul_i32 s44, s44, 54"); e("s_mul_i32 s45, s42, 14"); e("s_add_u32 s44, s44, s45"); e("s_add_u32 s44, s44, 6")
        e("s_cmp_ge_u32 s40, 48"); e("s_cselect_b32 s43, s44, s43"); e("s_cselect_b32 s44, 7, 1")
        e("s_add_u32 s44, s44, s43")
        e("s_mul_i32 s37, s43, %d", 16 * 1280); e("s_add_u32 s37, s37, s36")
        e("buffer_load_dwordx4 v[%d:%d], v%d, s[%d:%d], s37 offen", LD + 8 * i, LD + 8 * i + 3, VA, SRC, SRC + 3)
        e("s_mul_i32 s37, s44, %d", 16 * 1280); e("s_add_u32 s37, s37, s36")
        e("buffer_load_dwordx4 v[%d:%d], v%d, s[%d:%d], s37 offen", LD + 8 * i + 4, LD + 8 * i + 7, VA, SRC, SRC + 3)
    e("v_mov_b32 v%d, v%d", VD0, VL16)
    e("s_cmp_eq_u32 s32, 2"); e("s_cselect_b32 s38, 0x%x, 0", OOB)
    e("v_add_u32 v%d, s38, v%d", VD1, VL16)
    e("s_mul_i32 s39, s34, 286720"); e("s_mul_i32 s40, s33, %d", 45 * 1024); e("s_add_u32 s39, s39, s40")
    e("s_lshl_b32 s40, s32, 11"); e("s_add_u32 s39, s39, s40"); e("s_add_u32 s39, s39, 0x%x", W2)
    for i in range(9):
        e("s_add_u32 s40, s39, %d", i * 5 * 1024)
        e("s_add_u32 s41, s39, %d", i * 5 * 1024 + 1024)
        unit_body(i, 9, SEL0, SEL1, 40, 41, VD0, VD1, False, True)
    e("s_endpgm")

    a.label(name + "_D")
    e("s_sub_u32 s30, s2, %d", OD)
    e("s_lshr_b32 s31, s30, 1")
    e("s_and_b32 s33, s30, 1")
    e("s_mul_hi_u32 s34, s31, 0x55555556")
    e("s_mul_i32 s32, s34, 3"); e("s_sub_u32 s32, s31, s32")
    make_srd(a, SRC, 14, D * D * 2)
    e("s_mul_i32 s37, s34, 160")
    e("s_lshl_b32 s36, s32, 6"); e("s_add_u32 s36, s36, s37")
    e("v_and_b32 v%d, 3, v%d", T0, VLO)
    e("v_lshrrev_b32 v%d, 2, v%d", T1, VLO)
    e("v_mul_u32_u24 v%d, 10, v%d", T1, T1)
    e("v_add_u32 v%d, v%d, v%d", T2, T1, T0)
    e("v_and_b32 v%d, 1, v%d", T3, T0)
    e("v_add3_u32 v%d, v%d, v%d, 8", T3, T3, T1)
    e("v_lshrrev_b32 v%d, 1, v%d", 30, T0)
    e("v_mul_u32_u24 v%d, 40, v%d", 30, 30)
    e("v_add_u32 v%d, v%d, v%d", T3, T3, 30)
    for T in (T2, T3):
        e("v_mul_u32_u24 v%d, 1280, v%d", T, T)
        e("v_lshl_add_u32 v%d, v%d, 4, v%d", T, VQD, T)
    e("s_cmp_eq_u32 s33, 1"); e("s_cbranch_scc1 %s_D1", name)
    for g in range(2):
        if g == 1:
            a.label(name + "_D1"); a.fence()
        for i in range(10):
            kap = 10 * g + i
            for half in range(2):
                if kap < 16: row, v = 40 * kap + 4 * half, T2
                else: row, v = 160 * (kap - 16) + 80 * half, T3
                e("s_add_u32 s37, s36, %d", row * 1280)
                e("buffer_load_dwordx4 v[%d:%d], v%d, s[%d:%d], s37 offen", LD + 8 * i + 4 * half, LD + 8 * i + 4 * half + 3, v, SRC, SRC + 3)
        if g == 0: e("s_branch %s_D2", name)
    a.label(name + "_D2"); a.fence()
    e("v_mov_b32 v%d, v%d", VD0, VL16)
    e("s_cmp_eq_u32 s32, 2"); e("s_cselect_b32 s38, 0x%x, 0", OOB)
    e("v_add_u32 v%d, s38, v%d", VD1, VL16)
    e("s_mul_i32 s39, s34, %d", 100 * 1024); e("s_mul_i32 s40, s33, %d", 50 * 1024); e("s_add_u32 s39, s39, s40")
    e("s_lshl_b32 s40, s32, 11"); e("s_add_u32 s39, s39, s40"); e("s_add_u32 s39, s39, 0x%x", WO)
    for i in range(10):
        e("s_add_u32 s40, s39, %d", i * 5 * 1024)
        e("s_add_u32 s41, s39, %d", i * 5 * 1024 + 1024)
        unit_body(i, 10, SEL0, SEL1, 40, 41, VD0, VD1, False, True)
    e("s_endpgm")

    a.label(name + "_E")
    e("s_sub_u32 s30, s2, %d", OE)
    make_srd(a, SRC, 8, S * D * 2)
    e("v_mul_u32_u24 v%d, 1280, v%d", VA, VLO)
    e("v_lshl_add_u32 v%d, v%d, 3, v%d", VA, VQD, VA)
    e("s_mul_i32 s36, s30, %d", 16 * 1280)
    XR = 32
    for k in range(20):
        e("buffer_load_dwordx2 v[%d:%d], v%d, s[%d:%d], s36 offen offset:%d", XR + 4 * k, XR + 4 * k + 1, VA, SRC, SRC + 3, xt(k)[0] * 32)
        e("buffer_load_dwordx2 v[%d:%d], v%d, s[%d:%d], s36 offen offset:%d", XR + 4 * k + 2, XR + 4 * k + 3, VA, SRC, SRC + 3, xt(k)[1] * 32)
    e("v_mov_b32 v%d, 0", T0); e("v_mov_b32 v%d, 0", T1)
    e("s_mul_i32 s37, s30, 20480"); e("s_add_u32 s37, s37, 0x%x", XF[0])
    for k in range(20):
        e("s_waitcnt vmcnt(%d)", min(2 * (19 - k) + k, 63))
        if k and k % 4 == 0: e("s_add_u32 s37, s37, 4096")
        if k < 16:
            e("buffer_store_dwordx4 v[%d:%d], v%d, s[4:7], s37 offen offset:%d", XR + 4 * k, XR + 4 * k + 3, VL16, (k % 4) * 1024)
        else:
            e("v_lshlrev_b32 v%d, 3, v0", T2)
            e("buffer_store_dwordx2 v[%d:%d], v%d, s[4:7], s37 offen offset:%d", XR + 4 * k, XR + 4 * k + 1, T2, (k % 4) * 1024)
            e("buffer_store_dwordx2 v[%d:%d], v%d, s[4:7], s37 offen offset:%d", XR + 4 * k + 2, XR + 4 * k + 3, T2, (k % 4) * 1024 + 512)
        for q in range(4):
            e("v_dot2_f32_bf16 v%d, v%d, v%d, v%d", T0, XR + 4 * k + q, ONES, T0)
            e("v_dot2_f32_bf16 v%d, v%d, v%d, v%d", T1, XR + 4 * k + q, XR + 4 * k + q, T1)
    for T in (T0, T1):
        e("v_mov_b32 v%d, v%d", T2, T)
        e("v_permlane32_swap_b32 v%d, v%d", T, T2)
        e("v_add_f32 v%d, v%d, v%d", T, T, T2)
        e("v_mov_b32 v%d, v%d", T2, T)
        e("v_permlane16_swap_b32 v%d, v%d", T, T2)
        e("v_add_f32 v%d, v%d, v%d", T, T, T2)
    SV = 112
    e("v_cmp_eq_u32 vcc, 0, v%d", VQD)
    e("v_cndmask_b32 v%d, 0, v%d, vcc", SV, T0)
    e("v_cndmask_b32 v%d, 0, v%d, vcc", SV + 1, T1)
    e("v_mov_b32 v%d, 0", SV + 2); e("v_mov_b32 v%d, 0", SV + 3)
    e("v_lshlrev_b32 v%d, 3, v%d", T2, VLO)
    e("v_lshl_add_u32 v%d, v%d, 8, v%d", T2, VQD, T2)
    e("s_lshl_b32 s37, s30, 10"); e("s_add_u32 s37, s37, 0x%x", ST[0])
    e("buffer_store_dwordx2 v[%d:%d], v%d, s[4:7], s37 offen", SV, SV + 1, T2)
    e("buffer_store_dwordx2 v[%d:%d], v%d, s[4:7], s37 offen offset:128", SV + 2, SV + 3, T2)
    e("s_endpgm")

    a.label(name + "_F")
    e("s_sub_u32 s30, s2, %d", OF)
    for i in range(4): e("v_mov_b32 v%d, 0", 32 + i)
    e("s_mul_i32 s36, s30, 49152"); e("s_add_u32 s36, s36, 0x%x", KV[0])
    for i in range(48):
        if i and i % 4 == 0: e("s_add_u32 s36, s36, 4096")
        e("buffer_store_dwordx4 v[32:35], v%d, s[4:7], s36 offen offset:%d", VL16, (i % 4) * 1024)
    e("s_mul_i32 s36, s30, 286720"); e("s_add_u32 s36, s36, 0x%x", W2 + 54 * 5120)
    for i in range(10):
        if i and i % 4 == 0: e("s_add_u32 s36, s36, 4096")
        e("buffer_store_dwordx4 v[32:35], v%d, s[4:7], s36 offen offset:%d", VL16, (i % 4) * 1024)
    e("s_mul_i32 s36, s30, 3072"); e("s_add_u32 s36, s36, 0x%x", CNT)
    for i in range(3):
        e("buffer_store_dwordx4 v[32:35], v%d, s[4:7], s36 offen offset:%d", VL16, i * 1024)
    a.label(name + "_end")
    e("s_endpgm")
    return dict(name=name, grid=PREP_TASKS, block=64, lds=0, vgpr=248, accum=None)
```

```python
from common import *

SW, SRB, SM, SL, STB, SCB = 8, 9, 10, 11, 12, 13
SXIN, SX1, SX2, SSTIN, SST1, SST2, SO, SH, SKV, SCNT, SAB = 48, 49, 50, 51, 52, 53, 54, 55, 56, 57, 58
STT0 = 59
STTW = 60
SM0 = 61
SRD_B1, SRD_B2, SRD_OUT = 36, 40, 44
VL16, VL16B, VL16C, VLO, VQD, VZ = 1, 2, 3, 4, 5, 6
VSTAMP = 6
LDS_B = 102400

class K:
    def __init__(self, a, name):
        self.a = a; self.e = a.e; self.name = name; self.nst = 0

DBGT = bool(os.environ.get("DBGT"))
DBGS = {(0, 0): 4, (0, 2): 5, (0, 10): 6, (0, 14): 7, (0, 18): 8, (1, 1): 9, (1, 2): 10, (1, 10): 11, (1, 14): 12, (1, 18): 13, (1, 20): 14}
def stamp(k, i):
    if DBGT and (k.layer, i) in DBGS:
        k.e("s_memrealtime s[98:99]"); k.e("s_waitcnt lgkmcnt(0)"); k.e("s_mov_b32 s%d, s98", 63 + DBGS[(k.layer, i)])
    if not DIAG: return
    e = k.e
    e("s_memrealtime s[98:99]" if os.environ.get("RT") else "s_memtime s[98:99]")
    e("s_mov_b32 m0, %d", k.layer * 32 + i)
    e("s_waitcnt lgkmcnt(0)")
    e("v_writelane_b32 v%d, s98, m0", VSTAMP)
    if i == 0 and k.layer == 0: e("s_mov_b32 s96, s98")

def lds_addr(off):
    return (VL16, VL16B, VL16C)[off >> 16], off & 0xffff

def dma(k, vm, goff_sgpr, gimm, lds_off, per_wave_m0=True):
    e = k.e
    e("s_add_u32 m0, s%d, %d", SM0, lds_off)
    e("s_add_u32 s17, s%d, %d", goff_sgpr, gimm)
    e("buffer_load_dwordx4 v%d, s[4:7], s17 offen lds", VL16)
    return vm.issue()

class BG:
    def __init__(self, k=None, vm=None): self.q = []; self.last = None; self.k = k; self.vm = vm
    def add(self, fn, l0=False):
        if l0 and self.k.layer != 0: return
        self.q.append(fn)
    def emit(self, n=1):
        c = 0
        while c < n and self.q:
            self.last = self.q.pop(0)(); c += 1
        return c
    def flush(self): self.emit(len(self.q))

def q_dma(k, vm, bg, sreg, setup, n, lds0, goff0=0, l0=False, order=None):
    first = (order[0] if order is not None else 0)
    def mk(i):
        def f():
            if i == first and setup is not None: setup()
            return dma(k, vm, sreg, goff0 + i * 4096, lds0 + i * 4096)
        return f
    for i in (order if order is not None else range(n)): bg.add(mk(i), l0)

VTOUCH = 254
def touch(k, vm, base, nbytes_fn, nbytes, half):
    e = k.e
    per = nbytes // 128
    lines = (per + 127) // 128
    e("s_lshr_b32 s17, s2, 3"); e("s_and_b32 s17, s17, 31"); e("s_lshl_b32 s17, s17, 2"); e("s_add_u32 s17, s17, s%d", SW)
    e("s_mul_i32 s17, s17, %d", per)
    e("s_add_u32 s17, s17, 0x%x", base)
    if half:
        e("s_lshr_b32 s18, s%d, 3", SM); e("s_mul_i32 s18, s18, %d", nbytes); e("s_add_u32 s17, s17, s18")
    e("v_lshlrev_b32 v7, 7, v0")
    for i in range((lines + 63) // 64):
        if i: e("s_add_u32 s17, s17, 8192")
        rem = lines - 64 * i
        if rem < 64:
            e("s_mov_b64 exec, 0x%x", (1 << rem) - 1) if rem <= 32 else (e("s_mov_b32 exec_lo, -1"), e("s_mov_b32 exec_hi, 0x%x", (1 << (rem - 32)) - 1))
        e("buffer_load_dword v%d, v7, s[4:7], s17 offen", VTOUCH); vm.issue()
        if rem < 64: e("s_mov_b64 exec, -1")

def touch_wq(k, vm): touch(k, vm, WQ, None, 8 * WQ_J, True)
def touch_w1(k, vm): touch(k, vm, W1, None, 8 * 143360, True)
def touch_wo(k, vm): touch(k, vm, WO, None, 8 * 102400, False)
def touch_w2(k, vm): touch(k, vm, W2, None, 8 * 286720, False)

def signal(k, phase, s_idx):
    e = k.e
    lab = k.a.newlabel("sig")
    e("s_cmp_lg_u32 s%d, 0", SW); e("s_cbranch_scc1 %s", lab)
    e("s_lshl_b32 s17, s%d, 7", s_idx); e("s_add_u32 s17, s17, s%d", SCNT)
    e("s_add_u32 s17, s17, %d", phase * 2048)
    e("s_mov_b64 exec, 1")
    e("v_mov_b32 v7, 1")
    e("buffer_atomic_add v7, off, s[4:7], s17")
    e("s_mov_b64 exec, -1")
    k.a.label(lab)

def wait_cnt(k, phase, s_idx, prev_layer=False, drain=True):
    e = k.e
    lab = k.a.newlabel("wbar"); lp = k.a.newlabel("poll"); ld = k.a.newlabel("pdone")
    e("s_cmp_lg_u32 s%d, 0", SW); e("s_cbranch_scc1 %s", lab)
    e("s_cmp_lg_u32 s%d, 0", SAB); e("s_cbranch_scc1 %s", lab)
    e("s_lshl_b32 s17, s%d, 7", s_idx); e("s_add_u32 s17, s17, s%d", SCNT)
    if prev_layer: e("s_sub_u32 s17, s17, %d", 5 * 2048 - phase * 2048)
    else: e("s_add_u32 s17, s17, %d", phase * 2048)
    e("s_mov_b32 s18, 0")
    if DIAG3 and phase in (1, 2): stamp(k, D3ID[phase] + 2)
    e("s_mov_b64 exec, 1")
    k.a.label(lp)
    e("buffer_load_dword v7, off, s[4:7], s17 sc1")
    e("s_waitcnt vmcnt(0)")
    e("v_readfirstlane_b32 s19, v7")
    e("s_cmp_ge_u32 s19, 16"); e("s_cbranch_scc1 %s", ld)
    e("s_add_u32 s18, s18, 1")
    e("s_cmp_lt_u32 s18, 0x20000"); e("s_cbranch_scc1 %s", lp)
    e("s_mov_b32 s%d, 1", SAB)
    k.a.label(ld)
    e("s_mov_b64 exec, -1")
    if DIAG3 and phase in (1, 2):
        e("s_mov_b32 m0, %d", k.layer * 32 + D3ID[phase] + 3); e("s_nop 0"); e("s_add_u32 s18, s18, s96"); e("v_writelane_b32 v%d, s18, m0", VSTAMP)
    k.a.label(lab)
    if drain: e("s_waitcnt vmcnt(0)")
    e("s_barrier")

def cnt_addr(k, phase, s_idx, prev_layer, dst):
    e = k.e
    e("s_lshl_b32 s%d, s%d, 7", dst, s_idx); e("s_add_u32 s%d, s%d, s%d", dst, dst, SCNT)
    if prev_layer: e("s_sub_u32 s%d, s%d, %d", dst, dst, 5 * 2048 - phase * 2048)
    else: e("s_add_u32 s%d, s%d, %d", dst, dst, phase * 2048)

SPOLL = 94
def prepoll(k, phase, s_idx, vreg, prev_layer=False):
    e = k.e
    cnt_addr(k, phase, s_idx, prev_layer, SPOLL)
    e("s_mov_b64 exec, 1")
    e("buffer_load_dword v%d, off, s[4:7], s%d sc1", vreg, SPOLL)
    e("s_mov_b64 exec, -1")
    return k.vm.issue()

def wait_self(k, idx, vreg):
    e = k.e
    lp = k.a.newlabel("poll"); ld = k.a.newlabel("pdone")
    k.vm.wait_for(k.a, idx)
    e("v_readfirstlane_b32 s19, v%d", vreg)
    e("s_cmp_ge_u32 s19, 16"); e("s_cbranch_scc1 %s", ld)
    e("s_cmp_lg_u32 s%d, 0", SAB); e("s_cbranch_scc1 %s", ld)
    e("s_mov_b32 s18, 0")
    e("s_mov_b64 exec, 1")
    k.a.label(lp)
    e("buffer_load_dword v%d, off, s[4:7], s%d sc1", vreg, SPOLL)
    e("s_waitcnt vmcnt(0)")
    e("v_readfirstlane_b32 s19, v%d", vreg)
    e("s_cmp_ge_u32 s19, 16"); e("s_cbranch_scc1 %s", ld)
    e("s_add_u32 s18, s18, 1")
    e("s_cmp_lt_u32 s18, 0x20000"); e("s_cbranch_scc1 %s", lp)
    e("s_mov_b32 s%d, 1", SAB)
    k.a.label(ld)
    e("s_mov_b64 exec, -1")

def issue_stats(k, vm, st_sgpr, tt_sgpr, ntt, dst):
    e = k.e
    e("v_lshlrev_b32 v7, 3, v%d", VLO); e("v_lshl_add_u32 v7, v%d, 8, v7", VQD)
    e("s_lshl_b32 s17, s%d, 10", tt_sgpr); e("s_add_u32 s17, s17, s%d", st_sgpr)
    last = None
    for tt in range(ntt):
        for h in range(2):
            e("buffer_load_dwordx2 v[%d:%d], v7, s[4:7], s17 offen offset:%d sc1", dst + 4 * tt + 2 * h, dst + 4 * tt + 2 * h + 1, tt * 1024 + h * 128); last = vm.issue()
    return last

def xfrag_load(k, vm, b, sx, kk):
    e = k.e
    if kk < 16:
        e("buffer_load_dwordx4 v[%d:%d], v%d, s[4:7], s%d offen offset:%d sc1", b, b + 3, VL16, sx, (kk % 4) * 1024)
        return vm.issue()
    e("v_lshlrev_b32 v7, 3, v0")
    e("buffer_load_dwordx2 v[%d:%d], v7, s[4:7], s%d offen offset:%d sc1", b, b + 1, sx, (kk % 4) * 1024); vm.issue()
    e("buffer_load_dwordx2 v[%d:%d], v7, s[4:7], s%d offen offset:%d sc1", b + 2, b + 3, sx, (kk % 4) * 1024 + 512)
    return vm.issue()

def stats_finish(k, ST4, R, T, double):
    e = k.e
    e("v_add_f32 v%d, v%d, v%d", ST4, ST4, ST4 + 2)
    e("v_add_f32 v%d, v%d, v%d", ST4 + 1, ST4 + 1, ST4 + 3)
    e("v_permlane16_swap_b32 v%d, v%d", ST4, ST4 + 1)
    e("v_add_f32 v%d, v%d, v%d", ST4, ST4, ST4 + 1)
    e("v_mov_b32 v%d, v%d", ST4 + 1, ST4)
    e("v_permlane32_swap_b32 v%d, v%d", ST4, ST4 + 1)
    e("v_add_f32 v%d, v%d, v%d", ST4, ST4, ST4 + 1)
    e("v_mov_b32 v%d, v%d", ST4 + 1, ST4)
    e("v_permlane16_swap_b32 v%d, v%d", ST4, ST4 + 1)
    e("v_mul_f32 v%d, 0x%x, v%d", ST4, f32bits(1.0 / 640), ST4)
    e("v_mul_f32 v%d, 0x%x, v%d", R, f32bits(1.0 / 640), ST4 + 1)
    e("v_fma_f32 v%d, -v%d, v%d, v%d", R, ST4, ST4, R)
    e("v_max_f32 v%d, 0, v%d", R, R)
    if not double:
        e("v_add_f32 v%d, 0x%x, v%d", R, f32bits(1e-5), R)
        e("v_rsq_f32 v%d, v%d", R, R)
    else:
        e("v_add_f32 v%d, 0x%x, v%d", T, f32bits(1e-5), R)
        e("v_rcp_f32 v%d, v%d", T + 1, T)
        e("v_rsq_f32 v%d, v%d", T, T)
        e("v_mul_f32 v%d, v%d, v%d", R, R, T + 1)
        e("v_add_f32 v%d, 0x%x, v%d", R, f32bits(1e-5), R)
        e("v_rsq_f32 v%d, v%d", R, R)
        e("v_mul_f32 v%d, v%d, v%d", R, R, T)

def lds_gemm(k, nk, ntile, ntt, lds_off, breg, acc, afr, nbuf, wait_b=None, hook=None, bcls="a", acls="a", zero_first=True):
    e = k.e
    def rd(kk):
        for t in range(ntile):
            base, off = lds_addr(lds_off(kk, t))
            r = afr + ((kk % nbuf) * ntile + t) * 4
            e("ds_read_b128 %s[%d:%d], v%d offset:%d", acls, r, r + 3, base, off)
    def rd1(kk, t):
        base, off = lds_addr(lds_off(kk, t))
        r = afr + ((kk % nbuf) * ntile + t) * 4
        e("ds_read_b128 %s[%d:%d], v%d offset:%d", acls, r, r + 3, base, off)
    for kk in range(min(nbuf - 1, nk)): rd(kk)
    for kk in range(nk):
        ahead = min(nbuf - 2, nk - 1 - kk) * ntile
        if wait_b: wait_b(kk, min(ahead, 15))
        else: e("s_waitcnt lgkmcnt(%d)", min(ahead, 15))
        n = 0
        for t in range(ntile):
            for tt in range(ntt):
                c = acc(tt, t)
                ra = afr + ((kk % nbuf) * ntile + t) * 4
                rb = breg(kk, tt)
                src = "0" if (kk == 0 and zero_first) else "v[%d:%d]" % (c, c + 3)
                e("v_mfma_f32_16x16x32_bf16 v[%d:%d], %s[%d:%d], %s[%d:%d], %s", c, c + 3, acls, ra, ra + 3, bcls, rb, rb + 3, src)
                n += 1
                kn = kk + nbuf - 1
                if kn < nk and (n - 1) % ntt == 0 and (n - 1) // ntt < ntile:
                    rd1(kn, (n - 1) // ntt)
                if hook: hook(kk, n)

def gemm2(k, nk, ntile, ntt, lds_off, breg, acc, afr, nbuf, need_b=None, hook=None):
    a, e = k.a, k.e
    lm = {}; st = dict(n=0, ret=-1)
    def rd1(kn, t):
        base, off = lds_addr(lds_off(kn, t))
        r = afr + ((kn % nbuf) * ntile + t) * 4
        e("ds_read_b128 v[%d:%d], v%d offset:%d", r, r + 3, base, off)
        lm[(kn, t)] = st["n"]; st["n"] += 1
    for kk in range(min(nbuf - 1, nk)):
        for t in range(ntile): rd1(kk, t)
    for kk in range(nk):
        n = 0
        for t in range(ntile):
            idx = lm[(kk, t)]
            lg = None
            if idx > st["ret"]:
                lg = min(15, st["n"] - 1 - idx)
                st["ret"] = max(idx, st["n"] - 1 - lg)
            if t == 0 and need_b is not None:
                need_b(kk, (" lgkmcnt(%d)" % lg) if lg is not None else "")
            elif lg is not None:
                e("s_waitcnt lgkmcnt(%d)", lg)
            for tt in range(ntt):
                c = acc(tt, t)
                ra = afr + ((kk % nbuf) * ntile + t) * 4
                rb = breg(kk, tt)
                src = "0" if kk == 0 else "v[%d:%d]" % (c, c + 3)
                e("v_mfma_f32_16x16x32_bf16 v[%d:%d], v[%d:%d], v[%d:%d], %s", c, c + 3, ra, ra + 3, rb, rb + 3, src)
                n += 1
                kn = kk + nbuf - 1
                if kn < nk and n <= ntile: rd1(kn, n - 1)
                if hook: hook(kk, n)

class Feed:
    def __init__(self, vm, ring=None):
        self.q = []; self.done = {}; self.vm = vm; self.ring = ring; self.waited = None
    def add(self, step, fn): self.q.append((step, fn))
    def emit(self, kk, n=1):
        c = 0
        while c < n and self.q:
            step, fn = self.q[0]
            if self.ring is not None and step - self.ring >= max(kk, 0): break
            self.q.pop(0); self.done[step] = fn(); c += 1
        return c
    def need(self, a):
        def f(kk, extra):
            assert all(s > kk for s, _ in self.q), "step %d loads not issued" % kk
            self.vm.wait_for(a, self.done[kk], extra)
        return f

def tick(k, c):
    if k.bg is None: return
    k.acc += c
    if k.acc >= k.period:
        k.acc = 0; k.bg.emit(1)

def softmax_pm(k, A0, C, PK, EP, EN, TM):
    e = k.e
    MX, NM_, CM, CN = TM, TM + 1, TM + 2, TM + 4
    e("v_max3_f32 v%d, v%d, v%d, v%d", MX, A0, A0 + 1, A0 + 2)
    e("v_max3_f32 v%d, -v%d, -v%d, -v%d", NM_, A0, A0 + 1, A0 + 2)
    for i in (3, 5, 7):
        e("v_max3_f32 v%d, v%d, v%d, v%d", MX, MX, A0 + i, A0 + i + 1)
        e("v_max3_f32 v%d, v%d, -v%d, -v%d", NM_, NM_, A0 + i, A0 + i + 1)
    e("v_max_f32 v%d, v%d, v%d", MX, MX, A0 + 9)
    e("v_max_f32 v%d, v%d, -v%d", NM_, NM_, A0 + 9)
    tick(k, 48)
    e("v_permlane16_swap_b32 v%d, v%d", MX, NM_)
    e("v_max_f32 v%d, v%d, v%d", MX, MX, NM_)
    e("v_mov_b32 v%d, v%d", NM_, MX)
    e("v_permlane16_swap_b32 v%d, v%d", MX, NM_)
    e("v_mul_f32 v%d, v%d, v%d", CM, MX, C)
    e("v_mul_f32 v%d, v%d, v%d", CN, NM_, C)
    for i in range(5):
        e("v_pk_fma_f32 v[%d:%d], v[%d:%d], v[%d:%d], v[%d:%d] op_sel_hi:[1,0,0] neg_lo:[0,0,1] neg_hi:[0,0,1]",
          EP + 2 * i, EP + 2 * i + 1, A0 + 2 * i, A0 + 2 * i + 1, C, C + 1, CM, CM + 1)
        e("v_pk_fma_f32 v[%d:%d], v[%d:%d], v[%d:%d], v[%d:%d] op_sel_hi:[1,0,0] neg_lo:[1,0,1] neg_hi:[1,0,1]",
          EN + 2 * i, EN + 2 * i + 1, A0 + 2 * i, A0 + 2 * i + 1, C, C + 1, CN, CN + 1)
        tick(k, 16)
    for i in range(10):
        e("v_exp_f32 v%d, v%d", EP + i, EP + i)
        e("v_exp_f32 v%d, v%d", EN + i, EN + i)
        tick(k, 32)
    for E, Sx in ((EP, CM), (EN, CN)):
        e("v_pk_add_f32 v[%d:%d], v[%d:%d], v[%d:%d]", Sx, Sx + 1, E, E + 1, E + 2, E + 3)
    for E, Sx in ((EP, CM), (EN, CN)):
        e("v_pk_add_f32 v[%d:%d], v[%d:%d], v[%d:%d]", MX if False else Sx, Sx + 1, Sx, Sx + 1, E + 4, E + 5)
    for E, Sx in ((EP, CM), (EN, CN)):
        e("v_pk_add_f32 v[%d:%d], v[%d:%d], v[%d:%d]", Sx, Sx + 1, Sx, Sx + 1, E + 6, E + 7)
    for E, Sx in ((EP, CM), (EN, CN)):
        e("v_pk_add_f32 v[%d:%d], v[%d:%d], v[%d:%d]", Sx, Sx + 1, Sx, Sx + 1, E + 8, E + 9)
    tick(k, 64)
    e("v_add_f32 v%d, v%d, v%d", CM, CM, CM + 1)
    e("v_add_f32 v%d, v%d, v%d", CN, CN, CN + 1)
    e("v_permlane16_swap_b32 v%d, v%d", CM, CN)
    e("v_add_f32 v%d, v%d, v%d", CM, CM, CN)
    e("v_mov_b32 v%d, v%d", CN, CM)
    e("v_permlane16_swap_b32 v%d, v%d", CM, CN)
    e("v_rcp_f32 v%d, v%d", CM, CM)
    e("v_rcp_f32 v%d, v%d", CN, CN)
    for i in range(5):
        e("v_pk_mul_f32 v[%d:%d], v[%d:%d], v[%d:%d] op_sel_hi:[1,0]", EP + 2 * i, EP + 2 * i + 1, EP + 2 * i, EP + 2 * i + 1, CM, CM + 1)
        e("v_pk_mul_f32 v[%d:%d], v[%d:%d], v[%d:%d] op_sel_hi:[1,0]", EN + 2 * i, EN + 2 * i + 1, EN + 2 * i, EN + 2 * i + 1, CN, CN + 1)
        tick(k, 24)
    for i in range(5):
        e("v_cvt_pk_bf16_f32 v%d, v%d, v%d", PK + i, EP + 2 * i, EP + 2 * i + 1)
    tick(k, 20)
    for i in range(5):
        e("v_cvt_pk_bf16_f32 v%d, v%d, v%d", PK + 5 + i, EN + 2 * i, EN + 2 * i + 1)
    tick(k, 20)

DIAG3 = int(os.environ.get("DIAG", "0")) == 3
D3ID = {1: 23, 2: 27, 3: 15, 4: 19}
def drain_and_signal(k, vm, last_store, phase, s_idx):
    vm.wait_for(k.a, last_store)
    if DIAG3 and phase in (1, 2): stamp(k, D3ID[phase])
    k.e("s_barrier")
    signal(k, phase, s_idx)
    if DIAG3 and phase in (1, 2): stamp(k, D3ID[phase] + 1)


def tile_offsets(k):
    e = k.e
    e("s_mul_i32 s25, s%d, 20480", STTW)
    e("s_lshl_b32 s3, s%d, 11", SCB); e("s_add_u32 s28, s25, s3")
    e("s_lshl_b32 s3, s%d, 9", SCB); e("s_add_u32 s29, s25, s3"); e("s_add_u32 s29, s29, 16384")

def issue_resid(k, vm, xres, RES, BI, bias):
    e = k.e
    last = None
    e("s_add_u32 s17, s28, s%d", xres)
    for p in range(2):
        e("buffer_load_dwordx4 v[%d:%d], v%d, s[4:7], s17 offen offset:%d sc1", RES + 4 * p, RES + 4 * p + 3, VL16, p * 1024); last = vm.issue()
    e("s_add_u32 s17, s29, s%d", xres)
    e("v_lshlrev_b32 v7, 3, v0")
    e("buffer_load_dwordx2 v[%d:%d], v7, s[4:7], s17 offen sc1", RES + 8, RES + 9); last = vm.issue()
    if bias:
        e("v_lshlrev_b32 v7, 3, v%d", VQD)
        e("s_mul_i32 s17, s%d, 160", SCB)
        for T in range(5):
            e("buffer_load_dwordx2 v[%d:%d], v7, s[%d:%d], s17 offen offset:%d", BI + 2 * T, BI + 2 * T + 1, SRD_B2, SRD_B2 + 3, T * 32); last = vm.issue()
    return last

def finish_tile(k, vm, FS, RES, BI, bias, xout, stout, can_be_final, TMPV):
    a, e = k.a, k.e
    OUTP, S1, S2, T1, T2 = TMPV, TMPV + 10, TMPV + 11, TMPV + 12, TMPV + 13
    for T in range(5):
        for h in range(2):
            for src in ([RES] + ([BI] if bias else [])):
                e("v_lshlrev_b32 v%d, 16, v%d", T1, src + 2 * T + h)
                e("v_and_b32 v%d, 0xffff0000, v%d", T2, src + 2 * T + h)
                e("v_pk_add_f32 v[%d:%d], v[%d:%d], v[%d:%d]", FS + T * 4 + 2 * h, FS + T * 4 + 2 * h + 1, FS + T * 4 + 2 * h, FS + T * 4 + 2 * h + 1, T1, T2)
    for T in range(5):
        for h in range(2):
            e("v_cvt_pk_bf16_f32 v%d, v%d, v%d", OUTP + 2 * T + h, FS + T * 4 + 2 * h, FS + T * 4 + 2 * h + 1)
    if can_be_final:
        e("v_mul_u32_u24 v7, 1280, v%d", VLO)
        e("v_lshl_add_u32 v7, v%d, 3, v7", VQD)
        e("s_mul_i32 s17, s%d, %d", STTW, 16 * 1280); e("s_mul_i32 s18, s%d, 160", SCB); e("s_add_u32 s17, s17, s18")
        for T in range(5):
            e("buffer_store_dwordx2 v[%d:%d], v7, s[%d:%d], s17 offen offset:%d", OUTP + 2 * T, OUTP + 2 * T + 1, SRD_OUT, SRD_OUT + 3, T * 32)
        if DIAG: globals()['stamp_flush'](k)
        if DBGT:
            e("s_waitcnt vmcnt(0)")
            e("s_memrealtime s[98:99]"); e("s_load_dwordx2 s[90:91], s[0:1], 80"); e("s_waitcnt lgkmcnt(0)")
            e("s_mov_b32 s%d, s98", 63 + 15)
            e("s_sub_u32 s90, s90, 512"); e("s_subb_u32 s91, s91, 0")
            make_srd(k.a, 84, 90, 256)
            e("s_mov_b64 exec, 1"); e("v_mov_b32 v1, 0")
            e("s_not_b32 s88, s88"); e("v_mov_b32 v2, s88"); e("buffer_atomic_umax v2, v1, s[84:87], 0 offen offset:12")
            for j in range(4, 16):
                e("v_mov_b32 v2, s%d", 63 + j); e("buffer_atomic_umax v2, v1, s[84:87], 0 offen offset:%d", 4 * j)
        e("s_endpgm")
        return None
    e("s_add_u32 s17, s28, s%d", xout)
    for p in range(2):
        e("buffer_store_dwordx4 v[%d:%d], v%d, s[4:7], s17 offen offset:%d sc1", OUTP + 4 * p, OUTP + 4 * p + 3, VL16, p * 1024); vm.issue()
    e("s_add_u32 s17, s29, s%d", xout)
    e("v_lshlrev_b32 v7, 3, v0")
    e("buffer_store_dwordx2 v[%d:%d], v7, s[4:7], s17 offen sc1", OUTP + 8, OUTP + 9); vm.issue()
    e("v_pk_add_f32 v[%d:%d], v[%d:%d], v[%d:%d]", T1, T2, FS, FS + 1, FS + 2, FS + 3)
    e("v_pk_mul_f32 v[%d:%d], v[%d:%d], v[%d:%d]", S1, S2, FS, FS + 1, FS, FS + 1)
    e("v_pk_fma_f32 v[%d:%d], v[%d:%d], v[%d:%d], v[%d:%d]", S1, S2, FS + 2, FS + 3, FS + 2, FS + 3, S1, S2)
    for i in range(4, 20, 2):
        e("v_pk_add_f32 v[%d:%d], v[%d:%d], v[%d:%d]", T1, T2, T1, T2, FS + i, FS + i + 1)
        e("v_pk_fma_f32 v[%d:%d], v[%d:%d], v[%d:%d], v[%d:%d]", S1, S2, FS + i, FS + i + 1, FS + i, FS + i + 1, S1, S2)
    e("v_add_f32 v%d, v%d, v%d", S2, S1, S2)
    e("v_add_f32 v%d, v%d, v%d", S1, T1, T2)
    e("v_permlane16_swap_b32 v%d, v%d", S1, S2)
    e("v_add_f32 v%d, v%d, v%d", S1, S1, S2)
    e("v_mov_b32 v%d, v%d", S2, S1)
    e("v_permlane32_swap_b32 v%d, v%d", S1, S2)
    e("v_add_f32 v%d, v%d, v%d", S1, S1, S2)
    e("v_mov_b32 v%d, v%d", S2, S1)
    e("v_permlane16_swap_b32 v%d, v%d", S1, S2)
    e("s_lshl_b32 s17, s%d, 10", STTW); e("s_lshl_b32 s18, s%d, 7", SCB); e("s_add_u32 s17, s17, s18"); e("s_add_u32 s17, s17, s%d", stout)
    e("s_mov_b64 exec, 0xffff")
    e("buffer_store_dwordx2 v[%d:%d], v7, s[4:7], s17 offen sc1", S1, S2); last = vm.issue()
    e("s_mov_b64 exec, -1")
    return last
```

```python
from main_head import *
P = dict(DP3=12, DEP4=6, NT=0, U1=8, U2=16, U3=8, U4=4, D1=12, D2=0, D3=0, TCH=1, WA=14, WB_=0, WO_=0, W2M=8, W3M=14, PWO=56, PWA=128, PW3=90, TW2=0, TB0=0, TBS=6, KSIG=20, KPRE=2, W1E=10, WOE=0, W1O=13, WJ=0)
for kv in os.environ.get("TUNE", "").split(","):
    if kv: P[kv.split("=")[0]] = int(kv.split("=")[1])
NT = " nt" if P["NT"] else ""
DIAG2 = int(os.environ.get("DIAG", "0")) == 2

def setup_wq(k, extra=0):
    e = k.e
    e("s_mul_i32 s33, s%d, %d", SM, WQ_J); e("s_add_u32 s33, s33, s%d", SM0); e("s_add_u32 s33, s33, 0x%x", WQ + extra)

SW2 = 62
W2X = 220
def w2_reg(n):
    return ("a", 4 * n) if n < 64 else ("v", W2X + 4 * (n - 64))
def w2_load(k, vm, n):
    i, T = n // 5, n % 5
    c, r = w2_reg(n)
    k.e("s_add_u32 s17, s%d, %d", SW2, i * 4 * 5120 + (T // 4) * 4096)
    k.e("buffer_load_dwordx4 %s[%d:%d], v%d, s[4:7], s17 offen offset:%d%s", c, r, r + 3, VL16, (T % 4) * 1024, NT)
    return vm.issue()
class W2Q:
    def __init__(self): self.n = 0
    def add(self, k, vm, bg, cnt):
        if k.layer != 0: return
        for _ in range(cnt):
            if self.n >= 64: return
            n = self.n; self.n += 1
            bg.add(lambda n=n: w2_load(k, vm, n), True)

VDUM = 253
def touch_items(k, vm, bg, base, blk, half, l0=False):
    if not P["TCH"]: return
    e = k.e
    per = 8 * blk // 128
    n = (per + 2047) // 2048
    def mk(i):
        def f():
            e("s_lshr_b32 s17, s2, 3"); e("s_and_b32 s17, s17, 31"); e("s_lshl_b32 s17, s17, 2"); e("s_add_u32 s17, s17, s%d", SW)
            e("s_mul_i32 s17, s17, %d", per)
            e("s_add_u32 s17, s17, 0x%x", base + i * 2048)
            if half:
                e("s_lshr_b32 s18, s%d, 3", SM); e("s_mul_i32 s18, s18, %d", 8 * blk); e("s_add_u32 s17, s17, s18")
            e("v_lshlrev_b32 v7, 7, v%d", VLO)
            e("buffer_load_dword v%d, v7, s[4:7], s17 offen", VDUM)
            return vm.issue()
        return f
    for i in range(n): bg.add(mk(i), l0)

def phase1(k):
    a, e = k.a, k.e
    w2q = k.w2q
    vm = k.vm
    X = 88
    ACCA = 8
    AFR = 48
    STR = 248
    EP, EN, TM = 48, 58, 68
    PK = 48
    VP = 74
    VPH, VPV = 80, 81
    stamp(k, 0)
    if k.layer: wait_cnt(k, 4, SRB, prev_layer=True)
    stamp(k, 1)
    SX0, SX1_ = 21, 22
    e("s_mul_i32 s%d, s%d, 20480", SX0, STT0); e("s_add_u32 s%d, s%d, s%d", SX0, SX0, SXIN)
    e("s_add_u32 s%d, s%d, 20480", SX1_, SX0)
    feed = Feed(vm)
    def xload(kk, tt):
        def f():
            sx = (SX0, SX1_)[tt]
            if kk % 4 == 0 and kk:
                e("s_add_u32 s%d, s%d, 4096", sx, sx)
            return xfrag_load(k, vm, X + (kk * 2 + tt) * 4, sx, kk)
        return f
    for kk in range(20):
        for tt in range(2): feed.add(kk, xload(kk, tt))
    U = P["U1"]
    feed.emit(-1, 4)
    issue_stats(k, vm, SSTIN, STT0, 2, STR)
    feed.emit(-1, 2 * U - 4)
    bg = BG(k, vm)
    wb_last = None
    if k.layer == 0:
        vm.wait_for(a, k.wa_last)
        e("s_barrier")
    q_dma(k, vm, bg, 33, lambda: setup_wq(k, WQ_B), 15, LDS_B)
    wbm = {}
    bg.add(lambda: wbm.setdefault("i", bg.last))
    def hook(kk, n):
        if n in (3, 8):
            if not feed.emit(kk, 1): bg.emit(1)
        if DIAG2 and n == 1 and kk in (0, 4, 9, 14): stamp(k, 23 + (0, 4, 9, 14).index(kk))
    gemm2(k, 20, 5, 2, lambda kk, t: (kk * 5 + t) * 1024, lambda kk, tt: X + (kk * 2 + tt) * 4,
          lambda tt, t: ACCA + tt * 20 + t * 4, AFR, 2, feed.need(a), hook)
    bg.flush()
    wb_last = wbm["i"]
    stamp(k, 2)
    e("s_barrier")
    e("v_lshrrev_b32 v%d, 1, v%d", TM, VQD)
    e("v_and_b32 v%d, 1, v%d", TM + 1, VQD)
    e("s_lshl_b32 s17, s%d, 5", SW)
    e("v_lshl_add_u32 v%d, v%d, 7, v%d", TM, TM, VLO)
    e("v_add_u32 v%d, s17, v%d", TM, TM)
    e("v_mul_u32_u24 v%d, 160, v%d", TM, TM)
    e("v_mul_u32_u24 v%d, 48, v%d", VPH, TM + 1); e("v_add_u32 v%d, v%d, v%d", VPH, VPH, TM)
    e("v_mul_u32_u24 v%d, 24, v%d", VPV, TM + 1); e("v_add_u32 v%d, v%d, v%d", VPV, VPV, TM)
    e("v_add_u32 v%d, 96, v%d", VPV, VPV)
    e("v_mov_b32 v%d, 0x3f80", VP + 5)
    Rr = lambda tt: STR + 4 * tt + 2
    Cc = lambda tt: STR + 4 * tt
    for tt in range(2):
        stats_finish(k, STR + 4 * tt, Rr(tt), TM, False)
        e("v_mul_f32 v%d, 0x%x, v%d", Cc(tt), f32bits(LOG2E), Rr(tt))
    touch_items(k, vm, bg, WO, 102400, False)
    if P["TW2"] == 1: touch_items(k, vm, bg, W2, 286720, False, l0=True)
    w2q.add(k, vm, bg, P["WA"])
    k.bg = bg; k.period = P["PWA"] if k.layer == 0 else 400; k.acc = 400
    for tt in range(2):
        A0 = ACCA + tt * 20
        softmax_pm(k, A0, Cc(tt), PK, EP, EN, TM)
        e("v_mov_b32 v%d, 0", PK + 10); e("v_mov_b32 v%d, 0", PK + 11)
        R = Rr(tt)
        for i in range(5):
            e("v_pk_mul_f32 v[%d:%d], v[%d:%d], v[%d:%d] op_sel_hi:[1,0]", A0 + 10 + 2 * i, A0 + 11 + 2 * i, A0 + 10 + 2 * i, A0 + 11 + 2 * i, R, R + 1)
        for i in range(5):
            e("v_cvt_pk_bf16_f32 v%d, v%d, v%d", VP + i, A0 + 10 + 2 * i, A0 + 11 + 2 * i)
        for g in range(3):
            e("ds_write_b128 v%d, v[%d:%d] offset:%d", VPH, PK + 4 * g, PK + 4 * g + 3, tt * 16 * 160 + g * 16)
        for g in range(3):
            e("ds_write_b64 v%d, v[%d:%d] offset:%d", VPV, VP + 2 * g, VP + 2 * g + 1, tt * 16 * 160 + g * 8)
    k.bg = None
    bg.flush()
    VTA, VTB = 84, 85
    T0, T1 = TM, TM + 1
    e("v_lshrrev_b32 v%d, 2, v%d", T0, VLO)
    e("v_lshl_add_u32 v%d, v%d, 2, v%d", T0, VQD, T0)
    e("s_lshr_b32 s17, s%d, 1", SW); e("s_lshl_b32 s17, s17, 7")
    e("v_add_u32 v%d, s17, v%d", T0, T0)
    e("v_mul_u32_u24 v%d, 160, v%d", VTB, T0)
    e("v_and_b32 v%d, 3, v%d", T1, VLO)
    e("v_lshl_add_u32 v%d, v%d, 3, v%d", VTB, T1, VTB)
    e("s_and_b32 s19, s%d, 1", SW)
    e("s_lshl_b32 s17, s19, 5"); e("s_add_u32 s17, s17, 96")
    e("v_add_u32 v%d, s17, v%d", VTA, VTB)
    VA0, VA3 = 86, 87
    e("v_mov_b32 v%d, 0x%x", T1, OOB)
    e("v_lshlrev_b32 v%d, 2, v0", VA0)
    e("s_cmp_eq_u32 s19, 1"); e("s_cselect_b32 s18, 2, 4")
    e("v_cmp_gt_u32 vcc, s18, v%d", VQD)
    e("v_cndmask_b32 v%d, v%d, v%d, vcc", VA0, T1, VA0)
    e("s_sub_u32 s18, 2, s19")
    e("v_cmp_ne_u32 vcc, s18, v%d", VQD)
    e("v_cndmask_b32 v%d, v%d, v%d, vcc", VA3, T1, VA0)
    e("s_lshl_b32 s17, s%d, 1", SM); e("s_lshr_b32 s3, s%d, 1", SW); e("s_add_u32 s17, s17, s3")
    e("s_mul_i32 s17, s17, %d", KV_HEAD); e("s_mul_i32 s3, s19, 3072"); e("s_add_u32 s17, s17, s3"); e("s_add_u32 s23, s17, s%d", SKV)
    e("s_waitcnt lgkmcnt(0)")
    e("s_barrier")
    stamp(k, 3)
    KC = 8
    TA = 20
    TB = 36
    for ks in range(4):
        for hf in range(2):
            e("ds_read_b64_tr_b16 v[%d:%d], v%d offset:%d", TA + ks * 4 + hf * 2, TA + ks * 4 + hf * 2 + 1, VTA, (32 * ks + 16 * hf) * 160)
        for b in range(3):
            for hf in range(2):
                r = TB + (ks * 3 + b) * 4 + hf * 2
                e("ds_read_b64_tr_b16 v[%d:%d], v%d offset:%d", r, r + 1, VTB, (32 * ks + 16 * hf) * 160 + 32 * b)
    for ks in range(4):
        e("s_waitcnt lgkmcnt(%d)", min(15, 8 * (3 - ks)))
        for b in range(3):
            r = TB + (ks * 3 + b) * 4
            c = KC + 4 * b
            e("v_mfma_f32_16x16x32_bf16 v[%d:%d], v[%d:%d], v[%d:%d], %s", c, c + 3, TA + 4 * ks, TA + 4 * ks + 3, r, r + 3, "0" if ks == 0 else "v[%d:%d]" % (c, c + 3))
    at_last = None
    for b in range(3):
        for r in range(4):
            e("buffer_atomic_add_f32 v%d, v%d, s[4:7], s23 offen offset:%d", KC + 4 * b + r, VA3 if r == 3 else VA0, b * 1024 + r * 256); at_last = vm.issue()
    vm.wait_for(a, wb_last)
    e("s_barrier")
    stamp(k, 4)
    ACCB = 20
    AFRB = 44
    bgt = BG(k, vm)
    touch_items(k, vm, bgt, W1, 143360, True)
    if P["TW2"] == 2: touch_items(k, vm, bgt, W2, 286720, False, l0=True)
    w2q.add(k, vm, bg, P["WB_"])
    def hookB(kk, n):
        if n == 3 and kk % 2 == 1: bg.emit(1)
        if n == 3 and kk >= P["TB0"] and (kk - P["TB0"]) % P["TBS"] == 0: bgt.emit(1)
    def kv_signal():
        vm.wait_for(a, at_last)
        e("s_barrier")
        signal(k, 0, SM)
    def needB(kk, extra):
        if kk == P["KSIG"]: kv_signal()
        if extra: e("s_waitcnt" + extra)
    gemm2(k, 20, 3, 2, lambda kk, t: LDS_B + (kk * 3 + t) * 1024, lambda kk, tt: X + (kk * 2 + tt) * 4,
          lambda tt, t: ACCB + tt * 12 + t * 4, AFRB, 3, needB, hookB)
    bg.flush()
    stamp(k, 5)
    if P["KSIG"] >= 20: kv_signal()
    else: e("s_barrier")
    EP, EN, TM = 88, 98, 108
    T0, T1 = TM, TM + 1
    PQ = 136
    for i in (PQ + 10, PQ + 11, PQ + 22, PQ + 23): e("v_mov_b32 v%d, 0", i)
    bgt.flush()
    def su_wo():
        e("s_mul_i32 s33, s%d, %d", SCB, 100 * 1024); e("s_add_u32 s33, s33, s%d", SM0); e("s_add_u32 s33, s33, 0x%x", WO)
    bg_wo = BG(k, vm); bge = BG(k, vm)
    q_dma(k, vm, bg_wo, 33, su_wo, 25, 0)
    for _ in range(P["WOE"]): bge.q.append(bg_wo.q.pop(0))
    k.bg = bge; k.period = P["PWO"]; k.acc = P["PWO"]
    VPOLL = 165
    for tt in range(2):
        if tt == 1 and P["KPRE"] == 1: kpre = prepoll(k, 0, SM, VPOLL)
        softmax_pm(k, ACCB + tt * 12, Cc(tt), PQ + 12 * tt, EP, EN, TM)
    k.bg = None
    if P["KPRE"] == 2: kpre = prepoll(k, 0, SM, VPOLL)
    bge.flush()
    VK0 = 160
    e("v_lshrrev_b32 v%d, 2, v%d", T0, VLO)
    e("v_and_b32 v%d, 3, v%d", T1, VLO)
    e("v_lshrrev_b32 v%d, 1, v%d", TM + 2, T0)
    e("v_mul_u32_u24 v%d, %d, v%d", TM + 4, KV_HEAD, TM + 2)
    e("v_lshl_add_u32 v%d, v%d, 8, v%d", TM + 4, T1, TM + 4)
    e("v_lshrrev_b32 v%d, 1, v%d", TM + 3, VQD)
    e("v_mov_b32 v%d, 0x%x", T1, OOB)
    e("v_cmp_eq_u32 vcc, v%d, v%d", TM + 2, TM + 3)
    e("v_cndmask_b32 v%d, v%d, v%d, vcc", TM + 4, T1, TM + 4)
    e("v_and_b32 v%d, 1, v%d", TM + 2, T0)
    e("v_and_b32 v%d, 1, v%d", TM + 3, VQD)
    e("s_mul_i32 s20, s%d, %d", SM, 2 * KV_HEAD); e("s_add_u32 s20, s20, s%d", SKV)
    OSC = LDS_B + 50 * 1024
    for i in range(3):
        e("s_add_u32 s3, s%d, %d", SW, 4 * i); e("s_min_u32 s3, s3, 8")
        e("s_mul_i32 s35, s3, 43"); e("s_lshr_b32 s35, s35, 7")
        e("s_mul_i32 s27, s35, 3"); e("s_sub_u32 s27, s3, s27")
        e("s_lshl_b32 s%d, s3, 10", 24 + i); e("s_add_u32 s%d, s%d, %d", 24 + i, 24 + i, OSC)
        e("s_lshl_b32 s28, s35, 6")
        e("s_add_u32 s35, s35, 3"); e("s_lshr_b32 s29, s35, 2"); e("s_mul_i32 s29, s29, 3072"); e("s_and_b32 s35, s35, 3"); e("s_lshl_b32 s35, s35, 6"); e("s_add_u32 s29, s29, s35")
        e("s_sub_u32 s29, s29, s28")
        e("v_mul_u32_u24 v%d, s29, v%d", VK0 + i, TM + 2)
        e("v_add3_u32 v%d, v%d, s28, v%d", VK0 + i, VK0 + i, TM + 4)
        e("s_lshr_b32 s28, s27, 1"); e("s_lshl_b32 s28, s28, 10"); e("s_and_b32 s35, s27, 1"); e("s_lshl_b32 s35, s35, 5"); e("s_add_u32 s28, s28, s35")
        e("s_add_u32 s27, s27, 3"); e("s_lshr_b32 s29, s27, 1"); e("s_lshl_b32 s29, s29, 10"); e("s_and_b32 s35, s27, 1"); e("s_lshl_b32 s35, s35, 5"); e("s_add_u32 s29, s29, s35")
        e("s_sub_u32 s29, s29, s28")
        e("v_mul_u32_u24 v%d, s29, v%d", TM + 5, TM + 3)
        e("v_add3_u32 v%d, v%d, s28, v%d", TM + 5, TM + 5, VK0 + i)
        e("v_mov_b32 v%d, v%d", VK0 + i, TM + 5)
    e("s_mov_b32 s93, s20")
    e("s_mul_i32 s20, s%d, 20480", STT0); e("s_add_u32 s20, s20, s%d", SO)
    e("s_lshl_b32 s3, s%d, 10", SM); e("s_add_u32 s21, s20, s3")
    e("s_lshl_b32 s3, s%d, 8", SM); e("s_add_u32 s22, s20, s3"); e("s_add_u32 s22, s22, 16384")
    stamp(k, 6)
    if P["KPRE"]: wait_self(k, kpre, VPOLL)
    else: wait_cnt(k, 0, SM, drain=False)
    stamp(k, 7)
    bg = BG(k, vm)
    KR = 168
    kvi = []
    for i in range(3):
        e("buffer_load_dwordx4 v[%d:%d], v%d, s[4:7], s93 offen sc1", KR + 8 * i, KR + 8 * i + 3, VK0 + i); vm.issue()
        e("buffer_load_dwordx4 v[%d:%d], v%d, s[4:7], s93 offen offset:16 sc1", KR + 8 * i + 4, KR + 8 * i + 7, VK0 + i); kvi.append(vm.issue())
    def su_w1():
        e("s_mul_i32 s34, s%d, 143360", SM); e("s_add_u32 s34, s34, s%d", SM0); e("s_add_u32 s34, s34, 0x%x", W1)
    q_dma(k, vm, bg, 34, su_w1, 12, LDS_B)
    def p48():
        e("s_mov_b32 m0, %d", LDS_B + 48 * 1024)
        e("s_sub_u32 s17, s34, s%d", SM0); e("s_add_u32 s17, s17, %d", 48 * 1024)
        e("buffer_load_dwordx4 v%d, s[4:7], s17 offen lds", VL16); return vm.issue()
    bg.add(p48)
    bg.emit(P["W1O"])
    bg_w1 = bg
    bg = BG(k, vm)
    w2q.add(k, vm, bg, P["WO_"])
    bg.flush()
    for i in range(3):
        e("v_add_u32 v7, s%d, v%d", 24 + i, VL16)
        vm.wait_for(a, kvi[i])
        for q in range(4):
            e("v_cvt_pk_bf16_f32 v%d, v%d, v%d", KR + 8 * i + q, KR + 8 * i + 2 * q, KR + 8 * i + 2 * q + 1)
        e("ds_write_b128 v7, v[%d:%d]", KR + 8 * i, KR + 8 * i + 3)
    e("s_waitcnt lgkmcnt(0)")
    e("s_barrier")
    KA_ = 192
    for f in (0, 3, 6, 1, 4, 7, 2, 5, 8):
        base, off = lds_addr(OSC + f * 1024)
        e("ds_read_b128 v[%d:%d], v%d offset:%d", KA_ + 4 * f, KA_ + 4 * f + 3, base, off)
    OC_ = 8
    for s in range(3):
        e("s_waitcnt lgkmcnt(%d)", 6 - 3 * s)
        for tt in range(2):
            for t in range(3):
                c = OC_ + tt * 12 + t * 4
                ka = KA_ + (t * 3 + s) * 4
                pb = PQ + 12 * tt + 4 * s
                e("v_mfma_f32_16x16x32_bf16 v[%d:%d], v[%d:%d], v[%d:%d], %s", c, c + 3, ka, ka + 3, pb, pb + 3, "0" if s == 0 else "v[%d:%d]" % (c, c + 3))
    OP = 32
    last = None
    for tt in range(2):
        c = OC_ + tt * 12
        e("v_add_f32 v%d, 0x%x, v%d", TM, f32bits(1e-6), c + 10)
        e("v_rcp_f32 v%d, v%d", TM, TM)
        for i in range(5):
            e("v_pk_mul_f32 v[%d:%d], v[%d:%d], v[%d:%d] op_sel_hi:[1,0]", c + 2 * i, c + 2 * i + 1, c + 2 * i, c + 2 * i + 1, TM, TM + 1)
        for i in range(5):
            e("v_cvt_pk_bf16_f32 v%d, v%d, v%d", OP + 6 * tt + i, c + 2 * i, c + 2 * i + 1)
        if tt:
            e("s_add_u32 s21, s21, 20480"); e("s_add_u32 s22, s22, 20480")
        e("buffer_store_dwordx4 v[%d:%d], v%d, s[4:7], s21 offen sc1", OP + 6 * tt, OP + 6 * tt + 3, VL16); vm.issue()
        e("v_lshlrev_b32 v7, 2, v0")
        e("buffer_store_dword v%d, v7, s[4:7], s22 offen sc1", OP + 6 * tt + 4); last = vm.issue()
    stamp(k, 8)
    bg = bg_wo
    bg.emit(P["D1"])
    tile_offsets(k)
    drain_and_signal(k, vm, last, 1, SRB)
    bg.flush()
    bg_w1.flush()
    w2q.add(k, vm, bg_w1, P["WJ"])
    bg_w1.flush()
    stamp(k, 9)

def phase2(k):
    a, e = k.a, k.e
    RES = 8
    FS = 20
    OF_ = 40
    TMPV = 120
    AFR = 136
    vm = k.vm
    e("s_mul_i32 s20, s%d, 20480", STTW); e("s_add_u32 s20, s20, s%d", SO)
    res_last = issue_resid(k, vm, SXIN, RES, None, False)
    wait_cnt(k, 1, SRB)
    stamp(k, 10)
    vm = k.vm
    feed = Feed(vm)
    def oload(kk):
        def f():
            if kk and kk % 4 == 0: e("s_add_u32 s20, s20, 4096")
            if kk < 16:
                e("buffer_load_dwordx4 v[%d:%d], v%d, s[4:7], s20 offen offset:%d sc1", OF_ + 4 * kk, OF_ + 4 * kk + 3, VL16, (kk % 4) * 1024)
                return vm.issue()
            e("v_lshlrev_b32 v7, 2, v0")
            for q in range(4):
                e("buffer_load_dword v%d, v7, s[4:7], s20 offen offset:%d sc1", OF_ + 4 * kk + q, (4 * (kk - 16) + q) * 256 - (kk - 16) // 4 * 0); last = vm.issue()
            return last
        return f
    for kk in range(20): feed.add(kk, oload(kk))
    feed.emit(-1, P["U2"])
    bg = BG(k, vm)
    k.w2q.add(k, vm, bg, P["W2M"])
    bg1 = BG(k, vm)
    q_dma(k, vm, bg1, 34, None, 23, 0, goff0=49 * 1024)
    def hook(kk, n):
        if n == 2:
            if not feed.emit(kk, 1) and kk < 10: bg.emit(1)
        if n == 4 and kk >= 10 and (kk - 10) < P["W1E"]: bg1.emit(1)
    need2 = feed.need(a)
    def need(kk, extra):
        if kk == 10 and P["W1E"]:
            bg.flush()
            if extra: e("s_waitcnt" + extra)
            e("s_barrier")
        need2(kk, extra)
    gemm2(k, 20, 5, 1, lambda kk, t: (kk * 5 + t) * 1024, lambda kk, tt: OF_ + 4 * kk, lambda tt, t: FS + 4 * t, AFR, 3, need, hook)
    bg.flush()
    stamp(k, 11)
    last = finish_tile(k, vm, FS, RES, None, False, SX1, SST1, False, TMPV)
    stamp(k, 12)
    bg = bg1
    if P["D2"]:
        e("s_barrier")
        bg.emit(P["D2"])
    drain_and_signal(k, vm, last, 2, SRB)
    bg.flush()
    k.w1_last = bg.last
    stamp(k, 13)

def w1_lds(kk, t):
    return LDS_B + (kk * 7 + t) * 1024 if kk < 7 else ((kk - 7) * 7 + t) * 1024

def phase3(k):
    a, e = k.a, k.e
    w2q = k.w2q
    ACC = 8
    STR = 64
    BIR = 72
    AFR = 88
    XR = 144
    DP = P["DP3"]
    assert XR + DP * 8 <= 248
    BF = 88
    RS = 116
    TM = 120
    X = 128
    PKD = 136
    KC0, KC1 = 164, 166
    VOB = 168
    STBASE = 26
    vm = k.vm
    e("s_and_b32 s17, s%d, 7", SM); e("s_mul_i32 s%d, s17, 7", STBASE)
    e("s_cmp_eq_u32 s17, 7"); e("s_cselect_b32 s%d, 48, s%d", STBASE, STBASE)
    e("s_lshr_b32 s3, s%d, 3", SM); e("s_mul_i32 s3, s3, 54"); e("s_add_u32 s%d, s%d, s3", STBASE, STBASE)
    e("v_lshlrev_b32 v7, 3, v%d", VQD)
    e("s_lshl_b32 s17, s%d, 5", STBASE)
    for t in range(7):
        e("buffer_load_dwordx2 v[%d:%d], v7, s[%d:%d], s17 offen offset:%d", BIR + 2 * t, BIR + 2 * t + 1, SRD_B1, SRD_B1 + 3, t * 32)
    SX0, SX1_ = 21, 22
    e("s_mul_i32 s%d, s%d, 20480", SX0, STT0); e("s_add_u32 s%d, s%d, s%d", SX0, SX0, SX1)
    e("s_add_u32 s%d, s%d, 20480", SX1_, SX0)
    wait_cnt(k, 2, SRB, drain=False)
    stamp(k, 14)
    vm = k.vm
    xreg = lambda kk, tt: XR + (kk % DP) * 8 + tt * 4
    feed = Feed(vm, ring=DP)
    def xload(kk, tt):
        def f():
            sx = (SX0, SX1_)[tt]
            if kk % 4 == 0 and kk:
                e("s_add_u32 s%d, s%d, 4096", sx, sx)
            return xfrag_load(k, vm, xreg(kk, tt), sx, kk)
        return f
    for kk in range(20):
        for tt in range(2): feed.add(kk, xload(kk, tt))
    feed.emit(-1, 4)
    issue_stats(k, vm, SST1, STT0, 2, STR)
    feed.emit(-1, 2 * P["U3"] - 4)
    bg = BG(k, vm)
    w2q.add(k, vm, bg, P["W3M"])
    bgt = BG(k, vm)
    touch_items(k, vm, bgt, WQ, WQ_J, True, l0=True)
    def hook(kk, n):
        if n in (4, 11):
            if not feed.emit(kk, 1) and not feed.q: bg.emit(1)
        if n == 7 and kk in (13, 16, 19): bgt.emit(1)
        if DIAG2 and n == 1 and kk in (0, 4, 9, 14): stamp(k, 27 + (0, 4, 9, 14).index(kk))
    need3 = feed.need(a)
    def need(kk, extra):
        if kk == 6:
            vm.wait_for(a, k.w1_last)
            e("s_barrier")
        need3(kk, extra)
    gemm2(k, 20, 7, 2, w1_lds, xreg, lambda tt, t: ACC + tt * 28 + t * 4, AFR, 2, need, hook)
    bg.flush()
    stamp(k, 15)
    for t in range(7):
        for h in range(2):
            e("v_lshlrev_b32 v%d, 16, v%d", BF + 4 * t + 2 * h, BIR + 2 * t + h)
            e("v_and_b32 v%d, 0xffff0000, v%d", BF + 4 * t + 2 * h + 1, BIR + 2 * t + h)
    K0 = -2.0 * LOG2E * 0.7978845608028654
    K1 = K0 * 0.044715
    e("v_mov_b32 v%d, 0x%x", KC0, f32bits(K0)); e("v_mov_b32 v%d, 0x%x", KC1, f32bits(K1))
    for tt in range(2): stats_finish(k, STR + 4 * tt, RS + 2 * tt, TM, True)
    bgt.flush()
    SHh = 21
    last = None
    e("s_and_b32 s17, s%d, 7", SM); e("s_cmp_ge_u32 s17, 6"); e("s_cselect_b32 s18, 0x%x, 0", OOB)
    e("v_lshlrev_b32 v%d, 3, v0", VOB); e("v_add_u32 v%d, s18, v%d", VOB, VOB)
    SHx = 22
    e("s_lshl_b32 s17, s17, 9"); e("s_lshr_b32 s18, s%d, 3", SM); e("s_mul_i32 s18, s18, 3072"); e("s_add_u32 s17, s17, s18")
    e("s_mul_i32 s18, s%d, 3072", SM); e("s_sub_u32 s%d, s17, s18", SHx); e("s_add_u32 s%d, s%d, %d", SHx, SHx, 48 * 1024)
    bge = BG(k, vm)
    w2q.add(k, vm, bge, 64)
    k.bg = bge; k.period = P["PW3"]; k.acc = P["PW3"]
    for tt in range(2):
        A0 = ACC + tt * 28
        R = RS + 2 * tt
        Pk = PKD + 14 * tt
        e("s_add_u32 s%d, s%d, %d", SHh, STT0, tt); e("s_mul_i32 s%d, s%d, %d", SHh, SHh, 54 * 1024); e("s_add_u32 s%d, s%d, s%d", SHh, SHh, SH)
        e("s_mul_i32 s17, s%d, 3072", SM); e("s_add_u32 s%d, s%d, s17", SHh, SHh)
        for t in range(7):
            x0 = A0 + 4 * t
            for h in range(2):
                x = x0 + 2 * h
                e("v_pk_fma_f32 v[%d:%d], v[%d:%d], v[%d:%d], v[%d:%d] op_sel_hi:[1,0,1]", x, x + 1, x, x + 1, R, R + 1, BF + 4 * t + 2 * h, BF + 4 * t + 2 * h + 1)
            for h in range(2):
                x = x0 + 2 * h
                e("v_pk_mul_f32 v[%d:%d], v[%d:%d], v[%d:%d]", X + 2 * h, X + 2 * h + 1, x, x + 1, x, x + 1)
            for h in range(2):
                e("v_pk_fma_f32 v[%d:%d], v[%d:%d], v[%d:%d], v[%d:%d] op_sel_hi:[1,0,0]", X + 2 * h, X + 2 * h + 1, X + 2 * h, X + 2 * h + 1, KC1, KC1 + 1, KC0, KC0 + 1)
            for h in range(2):
                x = x0 + 2 * h
                e("v_pk_mul_f32 v[%d:%d], v[%d:%d], v[%d:%d]", X + 2 * h, X + 2 * h + 1, X + 2 * h, X + 2 * h + 1, x, x + 1)
            for q in range(4): e("v_exp_f32 v%d, v%d", X + q, X + q)
            tick(k, 95)
            for h in range(2):
                e("v_pk_add_f32 v[%d:%d], v[%d:%d], 1.0 op_sel_hi:[1,0]", X + 2 * h, X + 2 * h + 1, X + 2 * h, X + 2 * h + 1)
            for q in range(4): e("v_rcp_f32 v%d, v%d", X + q, X + q)
            for h in range(2):
                x = x0 + 2 * h
                e("v_pk_mul_f32 v[%d:%d], v[%d:%d], v[%d:%d]", X + 2 * h, X + 2 * h + 1, X + 2 * h, X + 2 * h + 1, x, x + 1)
            e("v_cvt_pk_bf16_f32 v%d, v%d, v%d", Pk + 2 * t, X, X + 1)
            e("v_cvt_pk_bf16_f32 v%d, v%d, v%d", Pk + 2 * t + 1, X + 2, X + 3)
            tick(k, 95)
            if t in (1, 3, 5):
                e("buffer_store_dwordx4 v[%d:%d], v%d, s[4:7], s%d offen offset:%d sc1", Pk + 2 * t - 2, Pk + 2 * t + 1, VL16, SHh, (t // 2) * 1024); last = vm.issue()
            elif t == 6:
                e("s_add_u32 s17, s%d, s%d", SHh, SHx)
                e("buffer_store_dwordx2 v[%d:%d], v%d, s[4:7], s17 offen sc1", Pk + 12, Pk + 13, VOB); last = vm.issue()
    k.bg = None
    bge.flush()
    stamp(k, 16)
    bg = BG(k, vm)
    if k.layer == 0:
        e("s_barrier")
        q_dma(k, vm, bg, 33, lambda: setup_wq(k), 25, 0)
        bg.emit(P["D3"])
    tile_offsets(k)
    drain_and_signal(k, vm, last, 3, SRB)
    bg.flush()
    stamp(k, 17)

def phase4(k):
    a, e = k.a, k.e
    ACC = 8
    DEP = P["DEP4"]
    HR = 88
    RES = HR + DEP * 16
    BI = RES + 10
    TMPV = BI + 10
    assert TMPV + 14 <= W2X
    RD = 88
    NI = 14
    vm = k.vm
    for i in range(4):
        e("s_add_u32 s17, s%d, %d", SW, i); e("s_and_b32 s17, s17, 3")
        e("s_lshl_b32 s18, s%d, 2", STB); e("s_add_u32 s17, s17, s18")
        e("s_mul_i32 s17, s17, %d", 54 * 1024); e("s_add_u32 s17, s17, s%d", SH)
        e("s_add_u32 s%d, s17, s%d", 20 + i, SM0)
    e("s_cmp_lt_u32 s%d, 2", SW); e("s_cselect_b32 s24, 0, 4096")
    for n in range(64, 70): w2_load(k, vm, n)
    issue_resid(k, vm, SX1, RES, BI, True)
    wait_cnt(k, 3, SRB)
    stamp(k, 18)
    vm = k.vm
    feed = Feed(vm, ring=DEP)
    def hload(i, sl):
        def f():
            b = HR + ((i % DEP) * 4 + sl) * 4
            e("s_add_u32 s17, s%d, %d", 20 + sl, i * 4096)
            if i == NI - 1: e("s_sub_u32 s17, s17, s24")
            if i < 12:
                e("buffer_load_dwordx4 v[%d:%d], v%d, s[4:7], s17 offen sc1", b, b + 3, VL16)
                return vm.issue()
            e("v_lshlrev_b32 v7, 3, v0")
            e("buffer_load_dwordx2 v[%d:%d], v7, s[4:7], s17 offen sc1", b, b + 1); vm.issue()
            e("buffer_load_dwordx2 v[%d:%d], v7, s[4:7], s17 offen offset:512 sc1", b + 2, b + 3)
            return vm.issue()
        return f
    for i in range(NI):
        for sl in range(4): feed.add(i, hload(i, sl))
    feed.emit(-1, 4 * P["U4"])
    need = feed.need(a)
    for i in range(NI):
        need(i, "")
        n = 0
        for T in range(5):
            for sl in range(4):
                c = ACC + (sl * 5 + T) * 4
                wc, w = w2_reg(i * 5 + T)
                h = HR + ((i % DEP) * 4 + sl) * 4
                e("v_mfma_f32_16x16x32_bf16 v[%d:%d], %s[%d:%d], v[%d:%d], %s", c, c + 3, wc, w, w + 3, h, h + 3, "0" if i == 0 else "v[%d:%d]" % (c, c + 3))
                n += 1
                if n in (2, 7, 12, 17): feed.emit(i, 1)
    stamp(k, 19)
    for sl in range(1, 4):
        e("s_add_u32 s17, s%d, %d", SW, sl); e("s_and_b32 s17, s17, 3"); e("s_mul_i32 s17, s17, 15360")
        e("s_add_u32 s17, s17, %d", LDS_B + (sl - 1) * 5120)
        e("v_add_u32 v7, s17, v%d", VL16)
        for T in range(5):
            r = ACC + (sl * 5 + T) * 4
            e("ds_write_b128 v7, v[%d:%d] offset:%d", r, r + 3, T * 1024)
    e("s_mul_i32 s17, s%d, 15360", SW); e("s_add_u32 s17, s17, %d", LDS_B)
    e("v_add_u32 v7, s17, v%d", VL16)
    e("s_waitcnt lgkmcnt(0)")
    e("s_barrier")
    for n in range(15):
        e("ds_read_b128 v[%d:%d], v7 offset:%d", RD + 4 * n, RD + 4 * n + 3, n * 1024)
    for s in range(3):
        e("s_waitcnt lgkmcnt(%d)", 5 * (2 - s))
        for i in range(0, 20, 2):
            e("v_pk_add_f32 v[%d:%d], v[%d:%d], v[%d:%d]", ACC + i, ACC + i + 1, ACC + i, ACC + i + 1, RD + s * 20 + i, RD + s * 20 + i + 1)
    stamp(k, 20)
    last = finish_tile(k, vm, ACC, RES, BI, True, SX2, SST2, k.layer == 1, TMPV)
    if k.layer == 1: return
    stamp(k, 21)
    drain_and_signal(k, vm, last, 4, SRB)
    stamp(k, 22)

def stamp_flush(k):
    e = k.e
    e("s_waitcnt vmcnt(0)")
    e("s_lshl_b32 s17, s2, 2"); e("s_add_u32 s17, s17, s%d", SW); e("s_lshl_b32 s17, s17, 8"); e("s_add_u32 s17, s17, 0x%x", STAMP)
    e("v_lshlrev_b32 v7, 2, v0")
    e("buffer_store_dword v%d, v7, s[4:7], s17 offen", VSTAMP)
import main_head
main_head.stamp_flush = stamp_flush

def gen_main(a, name="main_kernel"):
    k = K(a, name); e = a.e
    k.bg = None; k.layer = 0
    k.w2q = W2Q(); k.vm = VM()
    kernel_begin(a, name)
    e("s_cmp_ge_u32 s2, 256"); e("s_cbranch_scc0 %s_go", name)
    e("s_endpgm")
    a.label(name + "_go")
    if DBGT: e("s_memrealtime s[88:89]")
    e("s_load_dwordx2 s[22:23], s[0:1], 88")
    e("s_load_dwordx2 s[24:25], s[0:1], 48")
    e("s_load_dwordx2 s[26:27], s[0:1], 64")
    e("s_load_dwordx2 s[28:29], s[0:1], 72")
    code_prefetch(a, None, name + "_end", 248, 16)
    e("v_lshrrev_b32 v6, 6, v0")
    e("v_and_b32 v0, 63, v0")
    e("v_readfirstlane_b32 s%d, v6", SW)
    e("v_lshlrev_b32 v%d, 4, v0", VL16)
    e("v_add_u32 v%d, 0x10000, v%d", VL16B, VL16)
    e("v_add_u32 v%d, 0x20000, v%d", VL16C, VL16)
    e("v_and_b32 v%d, 15, v0", VLO)
    e("v_lshrrev_b32 v%d, 4, v0", VQD)
    if DIAG: e("v_mov_b32 v%d, 0", VSTAMP)
    e("s_and_b32 s17, s2, 7"); e("s_lshr_b32 s18, s2, 3")
    e("s_lshr_b32 s19, s17, 1"); e("s_and_b32 s17, s17, 1")
    e("s_lshl_b32 s19, s19, 2"); e("s_and_b32 s3, s18, 3"); e("s_add_u32 s%d, s19, s3", SRB)
    e("s_lshr_b32 s%d, s18, 2", SCB)
    e("s_lshl_b32 s3, s17, 3"); e("s_add_u32 s%d, s3, s%d", SM, SCB)
    e("s_lshl_b32 s3, s%d, 1", SRB); e("s_add_u32 s%d, s3, s17", STB)
    e("s_lshl_b32 s%d, s%d, 3", STT0, SRB); e("s_lshl_b32 s3, s%d, 1", SW); e("s_add_u32 s%d, s%d, s3", STT0, STT0)
    e("s_lshl_b32 s%d, s%d, 2", STTW, STB); e("s_add_u32 s%d, s%d, s%d", STTW, STTW, SW)
    e("s_lshl_b32 s%d, s%d, 10", SM0, SW)
    e("s_mov_b32 s%d, 0", SAB)
    e("s_mul_i32 s%d, s%d, 286720", SW2, SCB); e("s_mul_i32 s17, s%d, 5120", SW); e("s_add_u32 s%d, s%d, s17", SW2, SW2); e("s_add_u32 s%d, s%d, 0x%x", SW2, SW2, W2)
    e("s_waitcnt lgkmcnt(0)")
    make_srd(a, 4, 22, WS_REC)
    make_srd(a, SRD_B1, 24, F * 2)
    make_srd(a, SRD_B2, 26, D * 2)
    make_srd(a, SRD_OUT, 28, S * D * 2)
    vm0 = k.vm
    setup_wq(k)
    for i in range(25): k.wa_last = dma(k, vm0, 33, i * 4096, i * 4096)
    for layer in range(2):
        k.layer = layer
        e("s_mov_b32 s%d, 0x%x", SXIN, XF[2 * layer]); e("s_mov_b32 s%d, 0x%x", SX1, XF[2 * layer + 1]); e("s_mov_b32 s%d, 0x%x", SX2, XF[2 * layer + 2 - 2 * layer * 0] if layer == 0 else XF[3])
        e("s_mov_b32 s%d, 0x%x", SSTIN, ST[2 * layer]); e("s_mov_b32 s%d, 0x%x", SST1, ST[2 * layer + 1]); e("s_mov_b32 s%d, 0x%x", SST2, ST[2] if layer == 0 else ST[3])
        e("s_mov_b32 s%d, 0x%x", SO, OB[layer]); e("s_mov_b32 s%d, 0x%x", SH, HB[layer]); e("s_mov_b32 s%d, 0x%x", SKV, KV[layer])
        e("s_mov_b32 s%d, 0x%x", SCNT, CNT + layer * 5 * 2048)
        phase1(k)
        phase2(k)
        phase3(k)
        phase4(k)
    assert k.w2q.n == 64
    a.label(name + "_end")
    e("s_endpgm")
    return dict(name=name, grid=256, block=256, lds=163840, vgpr=512, accum=256)
```

```python
from common import *

NA, NB, NC, ND, NE, NF = 96, 64, 144, 48, 128, 8
OA = 0; OB_ = OA + NA; OC = OB_ + NB; OD = OC + NC; OE = OD + ND; OF = OE + NE
PREP_TASKS = OF + NF

def gen_prep(a, name="prep_kernel"):
    kernel_begin(a, name)
    PSC = os.environ.get("PSC", "BCDEF")
    cur = {"t": "-"}
    def e(fmt, *args):
        if fmt.startswith("buffer_store") and "s66" not in fmt and cur["t"] in PSC: fmt += " sc1"
        a.e(fmt, *args)
    e("s_cmp_ge_u32 s2, %d", PREP_TASKS); e("s_cbranch_scc1 %s_end", name)
    if int(os.environ.get("PPF", "1")):
        lab = a.newlabel("pc")
        e("s_getpc_b64 s[70:71]")
        a.label(lab)
        e("s_lshr_b32 s72, s2, 3"); e("s_lshl_b32 s72, s72, 11")
        e("v_lshlrev_b32 v240, 4, v0"); e("v_add_u32 v240, s72, v240")
        e("v_min_u32 v241, main_kernel_end-%s-16, v240" % lab)
        e("global_load_dwordx4 v[244:247], v241, s[70:71]")
        e("v_add_u32 v240, 1024, v240"); e("v_min_u32 v241, main_kernel_end-%s-16, v240" % lab)
        e("global_load_dwordx4 v[244:247], v241, s[70:71]")
    e("s_load_dwordx4 s[8:11], s[0:1], 0")
    e("s_load_dwordx4 s[12:15], s[0:1], 16")
    e("s_load_dwordx2 s[16:17], s[0:1], 40")
    e("s_load_dwordx2 s[20:21], s[0:1], 56")
    e("s_load_dwordx2 s[22:23], s[0:1], 88")
    PD = bool(os.environ.get("PDIAG"))
    if PD: e("s_memrealtime s[60:61]")
    def pst(i):
        if PD or os.environ.get("DBGT"):
            e("s_memrealtime s[%d:%d]", 60 + 2 * i, 61 + 2 * i)
    def pfirst(n):
        if PD:
            e("s_waitcnt vmcnt(%d)", n - 1); e("s_memrealtime s[68:69]")
    DBGT = bool(os.environ.get("DBGT"))
    if DBGT: e("s_memrealtime s[60:61]"); e("s_load_dwordx2 s[74:75], s[0:1], 80")
    def pend():
        if DBGT:
            e("s_waitcnt vmcnt(0)")
            e("s_memrealtime s[64:65]"); e("s_waitcnt lgkmcnt(0)")
            make_srd(a, 76, 74, 256)
            e("s_mov_b64 exec, 1"); e("v_mov_b32 v1, 0")
            e("s_not_b32 s60, s60"); e("v_mov_b32 v2, s60"); e("buffer_atomic_umax v2, v1, s[76:79], 0 offen")
            e("v_mov_b32 v2, s64"); e("buffer_atomic_umax v2, v1, s[76:79], 0 offen offset:4")
            if cur["t"] in "AB":
                e("v_mov_b32 v2, s62"); e("buffer_atomic_umax v2, v1, s[76:79], 0 offen offset:8")
        if PD:
            e("s_waitcnt vmcnt(0)")
            e("s_memrealtime s[64:65]"); e("s_waitcnt lgkmcnt(0)")
            e("s_lshl_b32 s66, s2, 4"); e("s_add_u32 s66, s66, 0x%x", STAMP + 0x100000)
            e("s_mov_b64 exec, 1"); e("v_mov_b32 v1, 0")
            for j, r in enumerate((60, 62, 64, 68)):
                e("v_mov_b32 v2, s%d", r); e("buffer_store_dword v2, v1, s[4:7], s66 offen offset:%d", 4 * j)
        e("s_endpgm")
    VLO, VQD, VL16 = 1, 2, 3
    e("v_and_b32 v%d, 15, v0", VLO)
    e("v_lshrrev_b32 v%d, 4, v0", VQD)
    e("v_lshlrev_b32 v%d, 4, v0", VL16)
    ONES = 4
    for i in range(4): e("v_mov_b32 v%d, 0x3f803f80", ONES + i)
    SEL0, SEL1 = 8, 12
    build_selectors(a, VLO, VQD, SEL0, SEL1, 16, 17)
    e("s_waitcnt lgkmcnt(0)")
    make_srd(a, 4, 22, WS_REC)
    SRC = 24
    e("s_and_b32 s46, s2, 7"); e("s_lshr_b32 s47, s2, 3")
    if int(os.environ.get("PTOUCH", "0")):
        TI, TA_, TB_, TC_ = 232, 233, 234, 235
        TD = 236
        e("s_lshl_b32 s48, s47, 6"); e("v_add_u32 v%d, s48, v0", TI)
        def div(dst, src, d):
            mul = {3: 21846, 5: 13108}[d]
            e("v_mul_u32_u24 v%d, %d, v%d", dst, mul, src); e("v_lshrrev_b32 v%d, 16, v%d", dst, dst)
        make_srd(a, 52, 10, D * 3 * D * 2)
        e("s_mul_i32 s48, s46, 160"); e("s_and_b32 s48, s48, 0xffffff80")
        for rep in range(2):
            e("v_add_u32 v%d, %d, v%d", TA_, 3904 * rep, TI)
            div(TB_, TA_, 3)
            e("v_mul_u32_u24 v%d, 3, v%d", TC_, TB_); e("v_sub_u32 v%d, v%d, v%d", TA_, TA_, TC_)
            e("v_lshlrev_b32 v%d, 7, v%d", TA_, TA_)
            e("v_mul_u32_u24 v%d, 1280, v%d", TB_, TB_)
            e("v_add_u32 v%d, v%d, v%d", TA_, TA_, TB_)
            e("buffer_load_dword v%d, v%d, s[52:55], s48 offen", TD + rep, TA_)
        make_srd(a, 56, 16, D * F * 2)
        e("s_lshr_b32 s48, s46, 2"); e("s_mul_i32 s48, s48, 54"); e("s_and_b32 s49, s46, 3"); e("s_mul_i32 s49, s49, 14"); e("s_add_u32 s48, s48, s49")
        e("s_lshl_b32 s48, s48, 5"); e("s_and_b32 s48, s48, 0xffffff80")
        div(TB_, TI, 5)
        e("v_mul_u32_u24 v%d, 5, v%d", TC_, TB_); e("v_sub_u32 v%d, v%d, v%d", TA_, TI, TC_)
        e("v_lshlrev_b32 v%d, 7, v%d", TA_, TA_); e("v_mul_u32_u24 v%d, 3456, v%d", TB_, TB_); e("v_add_u32 v%d, v%d, v%d", TA_, TA_, TB_)
        e("buffer_load_dword v%d, v%d, s[56:59], s48 offen", TD + 2, TA_)
        e("s_cmp_ge_u32 s47, %d", int(os.environ.get("PTW", "20"))); e("s_cbranch_scc1 %s_nw", name)
        e("s_waitcnt vmcnt(0)")
        a.label(name + "_nw")
    e("s_cmp_lt_u32 s47, 12"); e("s_cbranch_scc1 %s_A", name)
    e("s_cmp_lt_u32 s47, 20"); e("s_cbranch_scc1 %s_B", name)
    e("s_cmp_lt_u32 s47, 38"); e("s_cbranch_scc1 %s_C", name)
    e("s_cmp_lt_u32 s47, 44"); e("s_cbranch_scc1 %s_D", name)
    e("s_cmp_lt_u32 s47, 60"); e("s_cbranch_scc1 %s_E", name)
    e("s_branch %s_F", name)

    LD = 32
    CC = 192
    FR = 208
    NM = 216
    BF0, BF1 = 224, 228
    TMP = 232
    VA, VD0, VD1 = 20, 21, 22
    T0, T1, T2, T3 = 25, 26, 27, 28

    def mf(c, x, b, srcc):
        e("v_mfma_f32_16x16x32_bf16 v[%d:%d], v[%d:%d], v[%d:%d], %s", c, c + 3, x, x + 3, b, b + 3, srcc)

    def colmean(n, B0, B1):
        for i in range(n):
            lo, hi = LD + 8 * i, LD + 8 * i + 4
            z = "0" if i == 0 else None
            mf(CC, lo, B0, z or "v[%d:%d]" % (CC, CC + 3))
            mf(CC + 4, hi, B0, z or "v[%d:%d]" % (CC + 4, CC + 7))
            mf(CC + 8, lo, B1, z or "v[%d:%d]" % (CC + 8, CC + 11))
            mf(CC + 12, hi, B1, z or "v[%d:%d]" % (CC + 12, CC + 15))
        for f in range(2):
            c = CC + 8 * f
            for i in range(1, 8): e("v_add_f32 v%d, v%d, v%d", c, c, c + i)
            e("v_mov_b32 v%d, v%d", T2, c)
            e("v_permlane32_swap_b32 v%d, v%d", c, T2)
            e("v_add_f32 v%d, v%d, v%d", c, c, T2)
            e("v_mov_b32 v%d, v%d", T2, c)
            e("v_permlane16_swap_b32 v%d, v%d", c, T2)
            e("v_add_f32 v%d, v%d, v%d", c, c, T2)
            e("v_mul_f32 v%d, 0x%x, v%d", NM + 4 * f, f32bits(-1.0 / 640), c)
            for i in range(1, 4): e("v_mov_b32 v%d, v%d", NM + 4 * f + i, NM + 4 * f)

    def unit_body(i, nunits, B0, B1, dst0, dst1, vd0, vd1, center, wait):
        nst = 2 * i
        if wait: e("s_waitcnt vmcnt(%d)", min(2 * (nunits - 1 - i) + nst, 63))
        lo, hi = LD + 8 * i, LD + 8 * i + 4
        c0 = "v[%d:%d]" % (NM, NM + 3) if center else "0"
        c1 = "v[%d:%d]" % (NM + 4, NM + 7) if center else "0"
        mf(CC, lo, B0, c0); mf(CC + 4, hi, B0, c0); mf(CC + 8, lo, B1, c1); mf(CC + 12, hi, B1, c1)
        for f in range(2):
            for q in range(4):
                e("v_cvt_pk_bf16_f32 v%d, v%d, v%d", FR + 4 * f + q, CC + 8 * f + 2 * q, CC + 8 * f + 2 * q + 1)
        e("buffer_store_dwordx4 v[%d:%d], v%d, s[4:7], s%d offen", FR, FR + 3, vd0, dst0)
        e("buffer_store_dwordx4 v[%d:%d], v%d, s[4:7], s%d offen", FR + 4, FR + 7, vd1, dst1)

    a.label(name + "_A"); cur["t"] = "A"
    e("s_lshr_b32 s32, s47, 2")
    e("s_and_b32 s33, s47, 3"); e("s_lshl_b32 s34, s46, 2"); e("s_add_u32 s33, s33, s34")
    make_srd(a, SRC, 10, D * 3 * D * 2)
    e("v_mul_u32_u24 v%d, 3840, v%d", VA, VLO)
    e("v_lshl_add_u32 v%d, v%d, 4, v%d", VA, VQD, VA)
    e("s_mul_i32 s34, s32, 1280")
    e("s_mul_i32 s35, s33, 40"); e("s_add_u32 s34, s34, s35")
    for i in range(20):
        e("s_add_u32 s36, s34, %d", xt(i)[0] * 16 * 3840)
        e("buffer_load_dwordx4 v[%d:%d], v%d, s[%d:%d], s36 offen", LD + 8 * i, LD + 8 * i + 3, VA, SRC, SRC + 3)
        e("s_add_u32 s36, s34, %d", xt(i)[1] * 16 * 3840)
        e("buffer_load_dwordx4 v[%d:%d], v%d, s[%d:%d], s36 offen", LD + 8 * i + 4, LD + 8 * i + 7, VA, SRC, SRC + 3)
    pfirst(40)
    e("s_cmp_eq_u32 s32, 2"); e("s_cbranch_scc1 %s_Av", name)
    PH = 40
    make_srd(a, PH, 12, H * DH * DH * 2)
    e("s_mul_i32 s37, s33, 800")
    e("v_mov_b32 v%d, 0x%x", T3, OOB)
    for ft in range(2):
        for cls in range(2):
            e("v_mul_u32_u24 v%d, 320, v%d", T0, VQD)
            e("v_lshl_add_u32 v%d, v%d, 1, v%d", T0, VLO, T0)
            if ft: e("v_add_u32 v%d, 32, v%d", T0, T0)
            e("v_cmp_gt_u32 vcc, %d, v%d", 3 if cls == 0 else 2, VQD)
            e("v_cndmask_b32 v%d, v%d, v%d, vcc", T0, T3, T0)
            if ft:
                e("v_cmp_gt_u32 vcc, 4, v%d", VLO)
                e("v_cndmask_b32 v%d, v%d, v%d, vcc", T0, T3, T0)
            for ee in range(4):
                el = cls * 4 + ee
                e("buffer_load_ushort v%d, v%d, s[%d:%d], s37 offen offset:%d", TMP + ft * 8 + el, T0, PH, PH + 3, el * 40)
    e("s_waitcnt vmcnt(0)")
    for ft, BF in enumerate((BF0, BF1)):
        for dw in range(4):
            e("v_lshl_or_b32 v%d, v%d, 16, v%d", BF + dw, TMP + ft * 8 + 2 * dw + 1, TMP + ft * 8 + 2 * dw)
    e("s_branch %s_A2", name)
    a.label(name + "_Av")
    e("s_waitcnt vmcnt(0)")
    for dw in range(4):
        e("v_mov_b32 v%d, v%d", BF0 + dw, SEL0 + dw)
        e("v_mov_b32 v%d, v%d", BF1 + dw, SEL1 + dw)
    a.label(name + "_A2")
    a.fence()
    e("s_and_b32 s39, s33, 1"); e("s_lshl_b32 s38, s39, 1")
    e("s_cmp_eq_u32 s32, 2"); e("s_cselect_b32 s37, 10, 0")
    OOBR = 29
    e("v_mov_b32 v%d, 0x%x", OOBR, OOB)
    for ft, vd in ((0, VD0), (1, VD1)):
        e("v_add_u32 v%d, %d, v%d", T1, 16 * ft, VLO)
        e("v_cmp_le_u32 vcc, 10, v%d", T1)
        e("v_cndmask_b32 v%d, 0, 1, vcc", T0)
        e("v_mul_u32_u24 v%d, 10, v%d", T2, T0)
        e("v_sub_u32 v%d, v%d, v%d", T2, T1, T2)
        e("v_add_u32 v%d, s37, v%d", T2, T2)
        e("v_add_u32 v%d, s38, v%d", T0, T0)
        e("v_lshrrev_b32 v%d, 2, v%d", vd, T2)
        e("v_lshlrev_b32 v%d, 10, v%d", vd, vd)
        e("v_and_b32 v%d, 3, v%d", 30, T2)
        e("v_lshl_add_u32 v%d, v%d, 2, v%d", 30, T0, 30)
        e("v_lshl_add_u32 v%d, v%d, 4, v%d", 30, VQD, 30)
        e("v_lshl_add_u32 v%d, v%d, 4, v%d", vd, 30, vd)
        if ft:
            e("v_cmp_gt_u32 vcc, 4, v%d", VLO)
            e("v_cndmask_b32 v%d, v%d, v%d, vcc", vd, OOBR, vd)
    pst(1)
    colmean(20, BF0, BF1)
    e("s_lshr_b32 s38, s33, 1")
    e("s_mul_i32 s39, s38, %d", WQ_J); e("s_add_u32 s39, s39, 0x%x", WQ)
    e("s_cmp_eq_u32 s32, 0"); e("s_cselect_b32 s36, %d, 0", WQ_B); e("s_movk_i32 s37, 5120"); e("s_cselect_b32 s37, 3072, s37")
    e("s_add_u32 s36, s36, s39")
    for i in range(20):
        unit_body(i, 20, BF0, BF1, 36, 36, VD0, VD1, True, False)
        e("s_add_u32 s36, s36, s37")
    pend()

    a.label(name + "_B"); cur["t"] = "B"
    e("s_sub_u32 s30, s47, 12")
    e("s_lshr_b32 s31, s30, 2"); e("s_lshl_b32 s34, s46, 1"); e("s_add_u32 s31, s31, s34")
    e("s_and_b32 s32, s30, 3")
    e("s_and_b32 s34, s31, 7"); e("s_mul_i32 s35, s34, 7")
    e("s_cmp_eq_u32 s34, 7"); e("s_cselect_b32 s35, 48, s35")
    e("s_lshr_b32 s34, s31, 3"); e("s_mul_i32 s34, s34, 54"); e("s_add_u32 s35, s35, s34")
    e("s_lshl_b32 s34, s32, 1"); e("s_add_u32 s35, s35, s34")
    make_srd(a, SRC, 16, D * F * 2)
    e("v_mul_u32_u24 v%d, 3456, v%d", VA, VLO)
    e("v_lshl_add_u32 v%d, v%d, 4, v%d", VA, VQD, VA)
    e("s_lshl_b32 s36, s35, 5")
    for i in range(20):
        e("s_add_u32 s37, s36, %d", xt(i)[0] * 16 * 3456)
        e("buffer_load_dwordx4 v[%d:%d], v%d, s[%d:%d], s37 offen", LD + 8 * i, LD + 8 * i + 3, VA, SRC, SRC + 3)
        e("s_add_u32 s37, s36, %d", xt(i)[1] * 16 * 3456)
        e("buffer_load_dwordx4 v[%d:%d], v%d, s[%d:%d], s37 offen", LD + 8 * i + 4, LD + 8 * i + 7, VA, SRC, SRC + 3)
    pfirst(40)
    e("v_mov_b32 v%d, v%d", VD0, VL16)
    e("s_cmp_eq_u32 s32, 3"); e("s_cselect_b32 s38, 0x%x, 0", OOB)
    e("v_add_u32 v%d, s38, v%d", VD1, VL16)
    e("s_waitcnt vmcnt(0)")
    pst(1)
    colmean(20, SEL0, SEL1)
    e("s_mul_i32 s39, s31, 143360")
    e("s_lshl_b32 s40, s32, 11"); e("s_add_u32 s39, s39, s40"); e("s_add_u32 s39, s39, 0x%x", W1)
    for i in range(20):
        e("s_add_u32 s40, s39, %d", i * 7 * 1024)
        e("s_add_u32 s41, s39, %d", i * 7 * 1024 + 1024)
        unit_body(i, 20, SEL0, SEL1, 40, 41, VD0, VD1, True, False)
    pend()

    a.label(name + "_C"); cur["t"] = "C"
    e("s_sub_u32 s30, s47, 20")
    e("s_mul_i32 s31, s30, 43"); e("s_lshr_b32 s31, s31, 7")
    e("s_mul_i32 s32, s31, 3"); e("s_sub_u32 s32, s30, s32")
    e("s_and_b32 s34, s31, 1"); e("s_and_b32 s35, s46, 6"); e("s_add_u32 s34, s34, s35")
    e("s_lshr_b32 s33, s31, 1"); e("s_and_b32 s35, s46, 1"); e("s_mul_i32 s35, s35, 3"); e("s_add_u32 s33, s33, s35")
    make_srd(a, SRC, 20, F * D * 2)
    e("v_mul_u32_u24 v%d, 1280, v%d", VA, VLO)
    e("v_lshl_add_u32 v%d, v%d, 4, v%d", VA, VQD, VA)
    e("s_mul_i32 s36, s34, 160")
    e("s_lshl_b32 s37, s32, 6"); e("s_add_u32 s36, s36, s37")
    for i in range(9):
        e("s_mul_i32 s40, s33, 9"); e("s_add_u32 s40, s40, %d", i)
        e("s_mul_i32 s41, s40, 43"); e("s_lshr_b32 s41, s41, 7")
        e("s_mul_i32 s42, s41, 3"); e("s_sub_u32 s42, s40, s42")
        e("s_and_b32 s43, s41, 7"); e("s_mul_i32 s43, s43, 7"); e("s_min_u32 s43, s43, 48")
        e("s_lshr_b32 s44, s41, 3"); e("s_mul_i32 s44, s44, 54"); e("s_add_u32 s43, s43, s44")
        e("s_lshl_b32 s44, s42, 1"); e("s_add_u32 s43, s43, s44")
        e("s_sub_u32 s44, s41, 16"); e("s_mul_i32 s44, s44, 54"); e("s_mul_i32 s45, s42, 14"); e("s_add_u32 s44, s44, s45"); e("s_add_u32 s44, s44, 6")
        e("s_cmp_ge_u32 s40, 48"); e("s_cselect_b32 s43, s44, s43"); e("s_cselect_b32 s44, 7, 1")
        e("s_add_u32 s44, s44, s43")
        e("s_mul_i32 s37, s43, %d", 16 * 1280); e("s_add_u32 s37, s37, s36")
        e("buffer_load_dwordx4 v[%d:%d], v%d, s[%d:%d], s37 offen", LD + 8 * i, LD + 8 * i + 3, VA, SRC, SRC + 3)
        e("s_mul_i32 s37, s44, %d", 16 * 1280); e("s_add_u32 s37, s37, s36")
        e("buffer_load_dwordx4 v[%d:%d], v%d, s[%d:%d], s37 offen", LD + 8 * i + 4, LD + 8 * i + 7, VA, SRC, SRC + 3)
    e("v_mov_b32 v%d, v%d", VD0, VL16)
    e("s_cmp_eq_u32 s32, 2"); e("s_cselect_b32 s38, 0x%x, 0", OOB)
    e("v_add_u32 v%d, s38, v%d", VD1, VL16)
    e("s_mul_i32 s39, s34, 286720"); e("s_mul_i32 s40, s33, %d", 45 * 1024); e("s_add_u32 s39, s39, s40")
    e("s_lshl_b32 s40, s32, 11"); e("s_add_u32 s39, s39, s40"); e("s_add_u32 s39, s39, 0x%x", W2)
    for i in range(9):
        e("s_add_u32 s40, s39, %d", i * 5 * 1024)
        e("s_add_u32 s41, s39, %d", i * 5 * 1024 + 1024)
        unit_body(i, 9, SEL0, SEL1, 40, 41, VD0, VD1, False, True)
    pend()

    a.label(name + "_D"); cur["t"] = "D"
    e("s_sub_u32 s30, s47, 38")
    e("s_mul_i32 s31, s30, 43"); e("s_lshr_b32 s31, s31, 7")
    e("s_mul_i32 s32, s31, 3"); e("s_sub_u32 s32, s30, s32")
    e("s_and_b32 s34, s46, 6"); e("s_add_u32 s34, s34, s31")
    e("s_and_b32 s33, s46, 1")
    make_srd(a, SRC, 14, D * D * 2)
    e("s_mul_i32 s37, s34, 160")
    e("s_lshl_b32 s36, s32, 6"); e("s_add_u32 s36, s36, s37")
    e("v_and_b32 v%d, 3, v%d", T0, VLO)
    e("v_lshrrev_b32 v%d, 2, v%d", T1, VLO)
    e("v_mul_u32_u24 v%d, 10, v%d", T1, T1)
    e("v_add_u32 v%d, v%d, v%d", T2, T1, T0)
    e("v_and_b32 v%d, 1, v%d", T3, T0)
    e("v_add3_u32 v%d, v%d, v%d, 8", T3, T3, T1)
    e("v_lshrrev_b32 v%d, 1, v%d", 30, T0)
    e("v_mul_u32_u24 v%d, 40, v%d", 30, 30)
    e("v_add_u32 v%d, v%d, v%d", T3, T3, 30)
    for T in (T2, T3):
        e("v_mul_u32_u24 v%d, 1280, v%d", T, T)
        e("v_lshl_add_u32 v%d, v%d, 4, v%d", T, VQD, T)
    e("s_cmp_eq_u32 s33, 1"); e("s_cbranch_scc1 %s_D1", name)
    for g in range(2):
        if g == 1:
            a.label(name + "_D1"); a.fence()
        for i in range(10):
            kap = 10 * g + i
            for half in range(2):
                if kap < 16: row, v = 40 * kap + 4 * half, T2
                else: row, v = 160 * (kap - 16) + 80 * half, T3
                e("s_add_u32 s37, s36, %d", row * 1280)
                e("buffer_load_dwordx4 v[%d:%d], v%d, s[%d:%d], s37 offen", LD + 8 * i + 4 * half, LD + 8 * i + 4 * half + 3, v, SRC, SRC + 3)
        if g == 0: e("s_branch %s_D2", name)
    a.label(name + "_D2"); a.fence()
    e("v_mov_b32 v%d, v%d", VD0, VL16)
    e("s_cmp_eq_u32 s32, 2"); e("s_cselect_b32 s38, 0x%x, 0", OOB)
    e("v_add_u32 v%d, s38, v%d", VD1, VL16)
    e("s_mul_i32 s39, s34, %d", 100 * 1024); e("s_mul_i32 s40, s33, %d", 50 * 1024); e("s_add_u32 s39, s39, s40")
    e("s_lshl_b32 s40, s32, 11"); e("s_add_u32 s39, s39, s40"); e("s_add_u32 s39, s39, 0x%x", WO)
    for i in range(10):
        e("s_add_u32 s40, s39, %d", i * 5 * 1024)
        e("s_add_u32 s41, s39, %d", i * 5 * 1024 + 1024)
        unit_body(i, 10, SEL0, SEL1, 40, 41, VD0, VD1, False, True)
    pend()

    a.label(name + "_E"); cur["t"] = "E"
    e("s_sub_u32 s30, s47, 44"); e("s_lshl_b32 s31, s46, 4"); e("s_add_u32 s30, s30, s31")
    make_srd(a, SRC, 8, S * D * 2)
    e("v_mul_u32_u24 v%d, 1280, v%d", VA, VLO)
    e("v_lshl_add_u32 v%d, v%d, 3, v%d", VA, VQD, VA)
    e("s_mul_i32 s36, s30, %d", 16 * 1280)
    XR = 32
    for k in range(20):
        e("buffer_load_dwordx2 v[%d:%d], v%d, s[%d:%d], s36 offen offset:%d", XR + 4 * k, XR + 4 * k + 1, VA, SRC, SRC + 3, xt(k)[0] * 32)
        e("buffer_load_dwordx2 v[%d:%d], v%d, s[%d:%d], s36 offen offset:%d", XR + 4 * k + 2, XR + 4 * k + 3, VA, SRC, SRC + 3, xt(k)[1] * 32)
    pfirst(40)
    e("v_mov_b32 v%d, 0", T0); e("v_mov_b32 v%d, 0", T1)
    e("s_mul_i32 s37, s30, 20480"); e("s_add_u32 s37, s37, 0x%x", XF[0])
    for k in range(20):
        e("s_waitcnt vmcnt(%d)", min(2 * (19 - k) + k, 63))
        if k and k % 4 == 0: e("s_add_u32 s37, s37, 4096")
        if k < 16:
            e("buffer_store_dwordx4 v[%d:%d], v%d, s[4:7], s37 offen offset:%d", XR + 4 * k, XR + 4 * k + 3, VL16, (k % 4) * 1024)
        else:
            e("v_lshlrev_b32 v%d, 3, v0", T2)
            e("buffer_store_dwordx2 v[%d:%d], v%d, s[4:7], s37 offen offset:%d", XR + 4 * k, XR + 4 * k + 1, T2, (k % 4) * 1024)
            e("buffer_store_dwordx2 v[%d:%d], v%d, s[4:7], s37 offen offset:%d", XR + 4 * k + 2, XR + 4 * k + 3, T2, (k % 4) * 1024 + 512)
        for q in range(4):
            e("v_dot2_f32_bf16 v%d, v%d, v%d, v%d", T0, XR + 4 * k + q, ONES, T0)
            e("v_dot2_f32_bf16 v%d, v%d, v%d, v%d", T1, XR + 4 * k + q, XR + 4 * k + q, T1)
    for T in (T0, T1):
        e("v_mov_b32 v%d, v%d", T2, T)
        e("v_permlane32_swap_b32 v%d, v%d", T, T2)
        e("v_add_f32 v%d, v%d, v%d", T, T, T2)
        e("v_mov_b32 v%d, v%d", T2, T)
        e("v_permlane16_swap_b32 v%d, v%d", T, T2)
        e("v_add_f32 v%d, v%d, v%d", T, T, T2)
    SV = 112
    e("v_cmp_eq_u32 vcc, 0, v%d", VQD)
    e("v_cndmask_b32 v%d, 0, v%d, vcc", SV, T0)
    e("v_cndmask_b32 v%d, 0, v%d, vcc", SV + 1, T1)
    e("v_mov_b32 v%d, 0", SV + 2); e("v_mov_b32 v%d, 0", SV + 3)
    e("v_lshlrev_b32 v%d, 3, v%d", T2, VLO)
    e("v_lshl_add_u32 v%d, v%d, 8, v%d", T2, VQD, T2)
    e("s_lshl_b32 s37, s30, 10"); e("s_add_u32 s37, s37, 0x%x", ST[0])
    e("buffer_store_dwordx2 v[%d:%d], v%d, s[4:7], s37 offen", SV, SV + 1, T2)
    e("buffer_store_dwordx2 v[%d:%d], v%d, s[4:7], s37 offen offset:128", SV + 2, SV + 3, T2)
    pend()

    a.label(name + "_F"); cur["t"] = "F"
    e("s_mov_b32 s30, s46")
    for i in range(4): e("v_mov_b32 v%d, 0", 32 + i)
    e("s_mul_i32 s36, s30, 49152"); e("s_add_u32 s36, s36, 0x%x", KV[0])
    for i in range(48):
        if i and i % 4 == 0: e("s_add_u32 s36, s36, 4096")
        e("buffer_store_dwordx4 v[32:35], v%d, s[4:7], s36 offen offset:%d", VL16, (i % 4) * 1024)
    e("s_mul_i32 s36, s30, 286720"); e("s_add_u32 s36, s36, 0x%x", W2 + 54 * 5120)
    for i in range(10):
        if i and i % 4 == 0: e("s_add_u32 s36, s36, 4096")
        e("buffer_store_dwordx4 v[32:35], v%d, s[4:7], s36 offen offset:%d", VL16, (i % 4) * 1024)
    e("s_mul_i32 s36, s30, 3072"); e("s_add_u32 s36, s36, 0x%x", CNT)
    for i in range(3):
        e("buffer_store_dwordx4 v[32:35], v%d, s[4:7], s36 offen offset:%d", VL16, i * 1024)
    pend()
    a.label(name + "_end")
    e("s_endpgm")
    return dict(name=name, grid=PREP_TASKS, block=64, lds=0, vgpr=248, accum=None)
```

```python
from common import *

SW, SRB, SM, SL, STB, SCB = 8, 9, 10, 11, 12, 13
SXIN, SX1, SX2, SSTIN, SST1, SST2, SO, SH, SKV, SCNT, SAB = 48, 49, 50, 51, 52, 53, 54, 55, 56, 57, 58
STT0 = 59
STTW = 60
SM0 = 61
SRD_B1, SRD_B2, SRD_OUT = 36, 40, 44
VL16, VL16B, VL16C, VLO, VQD, VZ = 1, 2, 3, 4, 5, 6
VSTAMP = 6
LDS_B = 102400

class K:
    def __init__(self, a, name):
        self.a = a; self.e = a.e; self.name = name; self.nst = 0

DBGT = bool(os.environ.get("DBGT"))
DBGS = {(0, 0): 4, (0, 2): 5, (0, 10): 6, (0, 14): 7, (0, 18): 8, (1, 1): 9, (1, 2): 10, (1, 10): 11, (1, 14): 12, (1, 18): 13, (1, 20): 14}
def stamp(k, i):
    if DBGT and (k.layer, i) in DBGS:
        k.e("s_memrealtime s[98:99]"); k.e("s_waitcnt lgkmcnt(0)"); k.e("s_mov_b32 s%d, s98", 63 + DBGS[(k.layer, i)])
    if not DIAG: return
    e = k.e
    e("s_memrealtime s[98:99]" if os.environ.get("RT") else "s_memtime s[98:99]")
    e("s_mov_b32 m0, %d", k.layer * 32 + i)
    e("s_waitcnt lgkmcnt(0)")
    e("v_writelane_b32 v%d, s98, m0", VSTAMP)
    if i == 0 and k.layer == 0: e("s_mov_b32 s96, s98")

def lds_addr(off):
    return (VL16, VL16B, VL16C)[off >> 16], off & 0xffff

def dma(k, vm, goff_sgpr, gimm, lds_off, per_wave_m0=True):
    e = k.e
    e("s_add_u32 m0, s%d, %d", SM0, lds_off)
    e("s_add_u32 s17, s%d, %d", goff_sgpr, gimm)
    e("buffer_load_dwordx4 v%d, s[4:7], s17 offen lds", VL16)
    return vm.issue()

class BG:
    def __init__(self, k=None, vm=None): self.q = []; self.last = None; self.k = k; self.vm = vm
    def add(self, fn, l0=False):
        if l0 and self.k.layer != 0: return
        self.q.append(fn)
    def emit(self, n=1):
        c = 0
        while c < n and self.q:
            self.last = self.q.pop(0)(); c += 1
        return c
    def flush(self): self.emit(len(self.q))

def q_dma(k, vm, bg, sreg, setup, n, lds0, goff0=0, l0=False, order=None):
    first = (order[0] if order is not None else 0)
    def mk(i):
        def f():
            if i == first and setup is not None: setup()
            return dma(k, vm, sreg, goff0 + i * 4096, lds0 + i * 4096)
        return f
    for i in (order if order is not None else range(n)): bg.add(mk(i), l0)

VTOUCH = 254
def touch(k, vm, base, nbytes_fn, nbytes, half):
    e = k.e
    per = nbytes // 128
    lines = (per + 127) // 128
    e("s_lshr_b32 s17, s2, 3"); e("s_and_b32 s17, s17, 31"); e("s_lshl_b32 s17, s17, 2"); e("s_add_u32 s17, s17, s%d", SW)
    e("s_mul_i32 s17, s17, %d", per)
    e("s_add_u32 s17, s17, 0x%x", base)
    if half:
        e("s_lshr_b32 s18, s%d, 3", SM); e("s_mul_i32 s18, s18, %d", nbytes); e("s_add_u32 s17, s17, s18")
    e("v_lshlrev_b32 v7, 7, v0")
    for i in range((lines + 63) // 64):
        if i: e("s_add_u32 s17, s17, 8192")
        rem = lines - 64 * i
        if rem < 64:
            e("s_mov_b64 exec, 0x%x", (1 << rem) - 1) if rem <= 32 else (e("s_mov_b32 exec_lo, -1"), e("s_mov_b32 exec_hi, 0x%x", (1 << (rem - 32)) - 1))
        e("buffer_load_dword v%d, v7, s[4:7], s17 offen", VTOUCH); vm.issue()
        if rem < 64: e("s_mov_b64 exec, -1")

def touch_wq(k, vm): touch(k, vm, WQ, None, 8 * WQ_J, True)
def touch_w1(k, vm): touch(k, vm, W1, None, 8 * 143360, True)
def touch_wo(k, vm): touch(k, vm, WO, None, 8 * 102400, False)
def touch_w2(k, vm): touch(k, vm, W2, None, 8 * 286720, False)

def signal(k, phase, s_idx):
    e = k.e
    lab = k.a.newlabel("sig")
    e("s_cmp_lg_u32 s%d, 0", SW); e("s_cbranch_scc1 %s", lab)
    e("s_lshl_b32 s17, s%d, 7", s_idx); e("s_add_u32 s17, s17, s%d", SCNT)
    e("s_add_u32 s17, s17, %d", phase * 2048)
    e("s_mov_b64 exec, 1")
    e("v_mov_b32 v7, 1")
    e("buffer_atomic_add v7, off, s[4:7], s17")
    e("s_mov_b64 exec, -1")
    k.a.label(lab)

def wait_cnt(k, phase, s_idx, prev_layer=False, drain=True):
    e = k.e
    lab = k.a.newlabel("wbar"); lp = k.a.newlabel("poll"); ld = k.a.newlabel("pdone")
    e("s_cmp_lg_u32 s%d, 0", SW); e("s_cbranch_scc1 %s", lab)
    e("s_cmp_lg_u32 s%d, 0", SAB); e("s_cbranch_scc1 %s", lab)
    e("s_lshl_b32 s17, s%d, 7", s_idx); e("s_add_u32 s17, s17, s%d", SCNT)
    if prev_layer: e("s_sub_u32 s17, s17, %d", 5 * 2048 - phase * 2048)
    else: e("s_add_u32 s17, s17, %d", phase * 2048)
    e("s_mov_b32 s18, 0")
    if DIAG3 and phase in (1, 2): stamp(k, D3ID[phase] + 2)
    e("s_mov_b64 exec, 1")
    k.a.label(lp)
    e("buffer_load_dword v7, off, s[4:7], s17 sc1")
    e("s_waitcnt vmcnt(0)")
    e("v_readfirstlane_b32 s19, v7")
    e("s_cmp_ge_u32 s19, 16"); e("s_cbranch_scc1 %s", ld)
    e("s_add_u32 s18, s18, 1")
    e("s_cmp_lt_u32 s18, 0x20000"); e("s_cbranch_scc1 %s", lp)
    e("s_mov_b32 s%d, 1", SAB)
    k.a.label(ld)
    e("s_mov_b64 exec, -1")
    if DIAG3 and phase in (1, 2):
        e("s_mov_b32 m0, %d", k.layer * 32 + D3ID[phase] + 3); e("s_nop 0"); e("s_add_u32 s18, s18, s96"); e("v_writelane_b32 v%d, s18, m0", VSTAMP)
    k.a.label(lab)
    if drain: e("s_waitcnt vmcnt(0)")
    e("s_barrier")

def cnt_addr(k, phase, s_idx, prev_layer, dst):
    e = k.e
    e("s_lshl_b32 s%d, s%d, 7", dst, s_idx); e("s_add_u32 s%d, s%d, s%d", dst, dst, SCNT)
    if prev_layer: e("s_sub_u32 s%d, s%d, %d", dst, dst, 5 * 2048 - phase * 2048)
    else: e("s_add_u32 s%d, s%d, %d", dst, dst, phase * 2048)

SPOLL = 94
def prepoll(k, phase, s_idx, vreg, prev_layer=False):
    e = k.e
    cnt_addr(k, phase, s_idx, prev_layer, SPOLL)
    e("s_mov_b64 exec, 1")
    e("buffer_load_dword v%d, off, s[4:7], s%d sc1", vreg, SPOLL)
    e("s_mov_b64 exec, -1")
    return k.vm.issue()

def wait_self(k, idx, vreg):
    e = k.e
    lp = k.a.newlabel("poll"); ld = k.a.newlabel("pdone")
    k.vm.wait_for(k.a, idx)
    e("v_readfirstlane_b32 s19, v%d", vreg)
    e("s_cmp_ge_u32 s19, 16"); e("s_cbranch_scc1 %s", ld)
    e("s_cmp_lg_u32 s%d, 0", SAB); e("s_cbranch_scc1 %s", ld)
    e("s_mov_b32 s18, 0")
    e("s_mov_b64 exec, 1")
    k.a.label(lp)
    e("buffer_load_dword v%d, off, s[4:7], s%d sc1", vreg, SPOLL)
    e("s_waitcnt vmcnt(0)")
    e("v_readfirstlane_b32 s19, v%d", vreg)
    e("s_cmp_ge_u32 s19, 16"); e("s_cbranch_scc1 %s", ld)
    e("s_add_u32 s18, s18, 1")
    e("s_cmp_lt_u32 s18, 0x20000"); e("s_cbranch_scc1 %s", lp)
    e("s_mov_b32 s%d, 1", SAB)
    k.a.label(ld)
    e("s_mov_b64 exec, -1")

def issue_stats(k, vm, st_sgpr, tt_sgpr, ntt, dst):
    e = k.e
    e("v_lshlrev_b32 v7, 3, v%d", VLO); e("v_lshl_add_u32 v7, v%d, 8, v7", VQD)
    e("s_lshl_b32 s17, s%d, 10", tt_sgpr); e("s_add_u32 s17, s17, s%d", st_sgpr)
    last = None
    for tt in range(ntt):
        for h in range(2):
            e("buffer_load_dwordx2 v[%d:%d], v7, s[4:7], s17 offen offset:%d sc1", dst + 4 * tt + 2 * h, dst + 4 * tt + 2 * h + 1, tt * 1024 + h * 128); last = vm.issue()
    return last

def xfrag_load(k, vm, b, sx, kk):
    e = k.e
    if kk < 16:
        e("buffer_load_dwordx4 v[%d:%d], v%d, s[4:7], s%d offen offset:%d sc1", b, b + 3, VL16, sx, (kk % 4) * 1024)
        return vm.issue()
    e("v_lshlrev_b32 v7, 3, v0")
    e("buffer_load_dwordx2 v[%d:%d], v7, s[4:7], s%d offen offset:%d sc1", b, b + 1, sx, (kk % 4) * 1024); vm.issue()
    e("buffer_load_dwordx2 v[%d:%d], v7, s[4:7], s%d offen offset:%d sc1", b + 2, b + 3, sx, (kk % 4) * 1024 + 512)
    return vm.issue()

def stats_finish(k, ST4, R, T, double):
    e = k.e
    e("v_add_f32 v%d, v%d, v%d", ST4, ST4, ST4 + 2)
    e("v_add_f32 v%d, v%d, v%d", ST4 + 1, ST4 + 1, ST4 + 3)
    e("v_permlane16_swap_b32 v%d, v%d", ST4, ST4 + 1)
    e("v_add_f32 v%d, v%d, v%d", ST4, ST4, ST4 + 1)
    e("v_mov_b32 v%d, v%d", ST4 + 1, ST4)
    e("v_permlane32_swap_b32 v%d, v%d", ST4, ST4 + 1)
    e("v_add_f32 v%d, v%d, v%d", ST4, ST4, ST4 + 1)
    e("v_mov_b32 v%d, v%d", ST4 + 1, ST4)
    e("v_permlane16_swap_b32 v%d, v%d", ST4, ST4 + 1)
    e("v_mul_f32 v%d, 0x%x, v%d", ST4, f32bits(1.0 / 640), ST4)
    e("v_mul_f32 v%d, 0x%x, v%d", R, f32bits(1.0 / 640), ST4 + 1)
    e("v_fma_f32 v%d, -v%d, v%d, v%d", R, ST4, ST4, R)
    e("v_max_f32 v%d, 0, v%d", R, R)
    if not double:
        e("v_add_f32 v%d, 0x%x, v%d", R, f32bits(1e-5), R)
        e("v_rsq_f32 v%d, v%d", R, R)
    else:
        e("v_add_f32 v%d, 0x%x, v%d", T, f32bits(1e-5), R)
        e("v_rcp_f32 v%d, v%d", T + 1, T)
        e("v_rsq_f32 v%d, v%d", T, T)
        e("v_mul_f32 v%d, v%d, v%d", R, R, T + 1)
        e("v_add_f32 v%d, 0x%x, v%d", R, f32bits(1e-5), R)
        e("v_rsq_f32 v%d, v%d", R, R)
        e("v_mul_f32 v%d, v%d, v%d", R, R, T)

def lds_gemm(k, nk, ntile, ntt, lds_off, breg, acc, afr, nbuf, wait_b=None, hook=None, bcls="a", acls="a", zero_first=True):
    e = k.e
    def rd(kk):
        for t in range(ntile):
            base, off = lds_addr(lds_off(kk, t))
            r = afr + ((kk % nbuf) * ntile + t) * 4
            e("ds_read_b128 %s[%d:%d], v%d offset:%d", acls, r, r + 3, base, off)
    def rd1(kk, t):
        base, off = lds_addr(lds_off(kk, t))
        r = afr + ((kk % nbuf) * ntile + t) * 4
        e("ds_read_b128 %s[%d:%d], v%d offset:%d", acls, r, r + 3, base, off)
    for kk in range(min(nbuf - 1, nk)): rd(kk)
    for kk in range(nk):
        ahead = min(nbuf - 2, nk - 1 - kk) * ntile
        if wait_b: wait_b(kk, min(ahead, 15))
        else: e("s_waitcnt lgkmcnt(%d)", min(ahead, 15))
        n = 0
        for t in range(ntile):
            for tt in range(ntt):
                c = acc(tt, t)
                ra = afr + ((kk % nbuf) * ntile + t) * 4
                rb = breg(kk, tt)
                src = "0" if (kk == 0 and zero_first) else "v[%d:%d]" % (c, c + 3)
                e("v_mfma_f32_16x16x32_bf16 v[%d:%d], %s[%d:%d], %s[%d:%d], %s", c, c + 3, acls, ra, ra + 3, bcls, rb, rb + 3, src)
                n += 1
                kn = kk + nbuf - 1
                if kn < nk and (n - 1) % ntt == 0 and (n - 1) // ntt < ntile:
                    rd1(kn, (n - 1) // ntt)
                if hook: hook(kk, n)

def gemm2(k, nk, ntile, ntt, lds_off, breg, acc, afr, nbuf, need_b=None, hook=None):
    a, e = k.a, k.e
    lm = {}; st = dict(n=0, ret=-1)
    def rd1(kn, t):
        base, off = lds_addr(lds_off(kn, t))
        r = afr + ((kn % nbuf) * ntile + t) * 4
        e("ds_read_b128 v[%d:%d], v%d offset:%d", r, r + 3, base, off)
        lm[(kn, t)] = st["n"]; st["n"] += 1
    for kk in range(min(nbuf - 1, nk)):
        for t in range(ntile): rd1(kk, t)
    for kk in range(nk):
        n = 0
        for t in range(ntile):
            idx = lm[(kk, t)]
            lg = None
            if idx > st["ret"]:
                lg = min(15, st["n"] - 1 - idx)
                st["ret"] = max(idx, st["n"] - 1 - lg)
            if t == 0 and need_b is not None:
                need_b(kk, (" lgkmcnt(%d)" % lg) if lg is not None else "")
            elif lg is not None:
                e("s_waitcnt lgkmcnt(%d)", lg)
            for tt in range(ntt):
                c = acc(tt, t)
                ra = afr + ((kk % nbuf) * ntile + t) * 4
                rb = breg(kk, tt)
                src = "0" if kk == 0 else "v[%d:%d]" % (c, c + 3)
                e("v_mfma_f32_16x16x32_bf16 v[%d:%d], v[%d:%d], v[%d:%d], %s", c, c + 3, ra, ra + 3, rb, rb + 3, src)
                n += 1
                kn = kk + nbuf - 1
                if kn < nk and n <= ntile: rd1(kn, n - 1)
                if hook: hook(kk, n)

class Feed:
    def __init__(self, vm, ring=None):
        self.q = []; self.done = {}; self.vm = vm; self.ring = ring; self.waited = None
    def add(self, step, fn): self.q.append((step, fn))
    def emit(self, kk, n=1):
        c = 0
        while c < n and self.q:
            step, fn = self.q[0]
            if self.ring is not None and step - self.ring >= max(kk, 0): break
            self.q.pop(0); self.done[step] = fn(); c += 1
        return c
    def need(self, a):
        def f(kk, extra):
            assert all(s > kk for s, _ in self.q), "step %d loads not issued" % kk
            self.vm.wait_for(a, self.done[kk], extra)
        return f

def tick(k, c):
    if k.bg is None: return
    k.acc += c
    if k.acc >= k.period:
        k.acc = 0; k.bg.emit(1)

def softmax_pm(k, A0, C, PK, EP, EN, TM):
    e = k.e
    MX, NM_, CM, CN = TM, TM + 1, TM + 2, TM + 4
    e("v_max3_f32 v%d, v%d, v%d, v%d", MX, A0, A0 + 1, A0 + 2)
    e("v_max3_f32 v%d, -v%d, -v%d, -v%d", NM_, A0, A0 + 1, A0 + 2)
    for i in (3, 5, 7):
        e("v_max3_f32 v%d, v%d, v%d, v%d", MX, MX, A0 + i, A0 + i + 1)
        e("v_max3_f32 v%d, v%d, -v%d, -v%d", NM_, NM_, A0 + i, A0 + i + 1)
    e("v_max_f32 v%d, v%d, v%d", MX, MX, A0 + 9)
    e("v_max_f32 v%d, v%d, -v%d", NM_, NM_, A0 + 9)
    tick(k, 48)
    e("v_permlane16_swap_b32 v%d, v%d", MX, NM_)
    e("v_max_f32 v%d, v%d, v%d", MX, MX, NM_)
    e("v_mov_b32 v%d, v%d", NM_, MX)
    e("v_permlane16_swap_b32 v%d, v%d", MX, NM_)
    e("v_mul_f32 v%d, v%d, v%d", CM, MX, C)
    e("v_mul_f32 v%d, v%d, v%d", CN, NM_, C)
    for i in range(5):
        e("v_pk_fma_f32 v[%d:%d], v[%d:%d], v[%d:%d], v[%d:%d] op_sel_hi:[1,0,0] neg_lo:[0,0,1] neg_hi:[0,0,1]",
          EP + 2 * i, EP + 2 * i + 1, A0 + 2 * i, A0 + 2 * i + 1, C, C + 1, CM, CM + 1)
        e("v_pk_fma_f32 v[%d:%d], v[%d:%d], v[%d:%d], v[%d:%d] op_sel_hi:[1,0,0] neg_lo:[1,0,1] neg_hi:[1,0,1]",
          EN + 2 * i, EN + 2 * i + 1, A0 + 2 * i, A0 + 2 * i + 1, C, C + 1, CN, CN + 1)
        tick(k, 16)
    for i in range(10):
        e("v_exp_f32 v%d, v%d", EP + i, EP + i)
        e("v_exp_f32 v%d, v%d", EN + i, EN + i)
        tick(k, 32)
    for E, Sx in ((EP, CM), (EN, CN)):
        e("v_pk_add_f32 v[%d:%d], v[%d:%d], v[%d:%d]", Sx, Sx + 1, E, E + 1, E + 2, E + 3)
    for E, Sx in ((EP, CM), (EN, CN)):
        e("v_pk_add_f32 v[%d:%d], v[%d:%d], v[%d:%d]", MX if False else Sx, Sx + 1, Sx, Sx + 1, E + 4, E + 5)
    for E, Sx in ((EP, CM), (EN, CN)):
        e("v_pk_add_f32 v[%d:%d], v[%d:%d], v[%d:%d]", Sx, Sx + 1, Sx, Sx + 1, E + 6, E + 7)
    for E, Sx in ((EP, CM), (EN, CN)):
        e("v_pk_add_f32 v[%d:%d], v[%d:%d], v[%d:%d]", Sx, Sx + 1, Sx, Sx + 1, E + 8, E + 9)
    tick(k, 64)
    e("v_add_f32 v%d, v%d, v%d", CM, CM, CM + 1)
    e("v_add_f32 v%d, v%d, v%d", CN, CN, CN + 1)
    e("v_permlane16_swap_b32 v%d, v%d", CM, CN)
    e("v_add_f32 v%d, v%d, v%d", CM, CM, CN)
    e("v_mov_b32 v%d, v%d", CN, CM)
    e("v_permlane16_swap_b32 v%d, v%d", CM, CN)
    e("v_rcp_f32 v%d, v%d", CM, CM)
    e("v_rcp_f32 v%d, v%d", CN, CN)
    for i in range(5):
        e("v_pk_mul_f32 v[%d:%d], v[%d:%d], v[%d:%d] op_sel_hi:[1,0]", EP + 2 * i, EP + 2 * i + 1, EP + 2 * i, EP + 2 * i + 1, CM, CM + 1)
        e("v_pk_mul_f32 v[%d:%d], v[%d:%d], v[%d:%d] op_sel_hi:[1,0]", EN + 2 * i, EN + 2 * i + 1, EN + 2 * i, EN + 2 * i + 1, CN, CN + 1)
        tick(k, 24)
    for i in range(5):
        e("v_cvt_pk_bf16_f32 v%d, v%d, v%d", PK + i, EP + 2 * i, EP + 2 * i + 1)
    tick(k, 20)
    for i in range(5):
        e("v_cvt_pk_bf16_f32 v%d, v%d, v%d", PK + 5 + i, EN + 2 * i, EN + 2 * i + 1)
    tick(k, 20)

DIAG3 = int(os.environ.get("DIAG", "0")) == 3
D3ID = {1: 23, 2: 27, 3: 15, 4: 19}
def drain_and_signal(k, vm, last_store, phase, s_idx):
    vm.wait_for(k.a, last_store)
    if DIAG3 and phase in (1, 2): stamp(k, D3ID[phase])
    k.e("s_barrier")
    signal(k, phase, s_idx)
    if DIAG3 and phase in (1, 2): stamp(k, D3ID[phase] + 1)


def tile_offsets(k):
    e = k.e
    e("s_mul_i32 s25, s%d, 20480", STTW)
    e("s_lshl_b32 s3, s%d, 11", SCB); e("s_add_u32 s28, s25, s3")
    e("s_lshl_b32 s3, s%d, 9", SCB); e("s_add_u32 s29, s25, s3"); e("s_add_u32 s29, s29, 16384")

def issue_resid(k, vm, xres, RES, BI, bias):
    e = k.e
    last = None
    e("s_add_u32 s17, s28, s%d", xres)
    for p in range(2):
        e("buffer_load_dwordx4 v[%d:%d], v%d, s[4:7], s17 offen offset:%d sc1", RES + 4 * p, RES + 4 * p + 3, VL16, p * 1024); last = vm.issue()
    e("s_add_u32 s17, s29, s%d", xres)
    e("v_lshlrev_b32 v7, 3, v0")
    e("buffer_load_dwordx2 v[%d:%d], v7, s[4:7], s17 offen sc1", RES + 8, RES + 9); last = vm.issue()
    if bias:
        e("v_lshlrev_b32 v7, 3, v%d", VQD)
        e("s_mul_i32 s17, s%d, 160", SCB)
        for T in range(5):
            e("buffer_load_dwordx2 v[%d:%d], v7, s[%d:%d], s17 offen offset:%d", BI + 2 * T, BI + 2 * T + 1, SRD_B2, SRD_B2 + 3, T * 32); last = vm.issue()
    return last

def finish_tile(k, vm, FS, RES, BI, bias, xout, stout, can_be_final, TMPV):
    a, e = k.a, k.e
    OUTP, S1, S2, T1, T2 = TMPV, TMPV + 10, TMPV + 11, TMPV + 12, TMPV + 13
    for T in range(5):
        for h in range(2):
            for src in ([RES] + ([BI] if bias else [])):
                e("v_lshlrev_b32 v%d, 16, v%d", T1, src + 2 * T + h)
                e("v_and_b32 v%d, 0xffff0000, v%d", T2, src + 2 * T + h)
                e("v_pk_add_f32 v[%d:%d], v[%d:%d], v[%d:%d]", FS + T * 4 + 2 * h, FS + T * 4 + 2 * h + 1, FS + T * 4 + 2 * h, FS + T * 4 + 2 * h + 1, T1, T2)
    for T in range(5):
        for h in range(2):
            e("v_cvt_pk_bf16_f32 v%d, v%d, v%d", OUTP + 2 * T + h, FS + T * 4 + 2 * h, FS + T * 4 + 2 * h + 1)
    if can_be_final:
        e("v_mul_u32_u24 v7, 1280, v%d", VLO)
        e("v_lshl_add_u32 v7, v%d, 3, v7", VQD)
        e("s_mul_i32 s17, s%d, %d", STTW, 16 * 1280); e("s_mul_i32 s18, s%d, 160", SCB); e("s_add_u32 s17, s17, s18")
        for T in range(5):
            e("buffer_store_dwordx2 v[%d:%d], v7, s[%d:%d], s17 offen offset:%d", OUTP + 2 * T, OUTP + 2 * T + 1, SRD_OUT, SRD_OUT + 3, T * 32)
        if DIAG: globals()['stamp_flush'](k)
        if DBGT:
            dl = k.a.newlabel("dbgskip"); dl2 = k.a.newlabel("dbgskip")
            e("s_waitcnt vmcnt(0)")
            e("s_memrealtime s[98:99]"); e("s_load_dwordx2 s[90:91], s[0:1], 80"); e("s_waitcnt lgkmcnt(0)")
            e("s_mov_b32 s%d, s98", 63 + 15)
            e("s_cmp_lg_u32 s%d, 0", SW); e("s_cbranch_scc1 %s", dl)
            make_srd(k.a, 84, 90, 256)
            e("s_mov_b64 exec, 1"); e("v_mov_b32 v1, 0")
            e("s_not_b32 s88, s88"); e("v_mov_b32 v2, s88"); e("buffer_atomic_umax v2, v1, s[84:87], 0 offen offset:12")
            for j in range(4, 16):
                e("v_mov_b32 v2, s%d", 63 + j); e("buffer_atomic_umax v2, v1, s[84:87], 0 offen offset:%d", 4 * j)
            e("s_mov_b64 exec, -1")
            e("s_cmp_lg_u32 s2, 0"); e("s_cbranch_scc1 %s", dl)
            e("v_lshlrev_b32 v3, 4, v0")
            for i in range(8):
                e("v_add_u32 v4, %d, v3", i * 1024)
                e("v_min_u32 v4, %d, v4", 487 * 16)
                e("s_mov_b32 s17, 0x%x", STAMP + 0x100000)
                e("buffer_load_dwordx4 v[8:11], v4, s[4:7], s17 offen sc1")
                e("s_waitcnt vmcnt(0)")
                e("v_not_b32 v8, v8")
                e("buffer_atomic_umax v8, v1, s[84:87], 0 offen")
                e("buffer_atomic_umax v10, v1, s[84:87], 0 offen offset:4")
            k.a.label(dl)
        e("s_endpgm")
        return None
    e("s_add_u32 s17, s28, s%d", xout)
    for p in range(2):
        e("buffer_store_dwordx4 v[%d:%d], v%d, s[4:7], s17 offen offset:%d sc1", OUTP + 4 * p, OUTP + 4 * p + 3, VL16, p * 1024); vm.issue()
    e("s_add_u32 s17, s29, s%d", xout)
    e("v_lshlrev_b32 v7, 3, v0")
    e("buffer_store_dwordx2 v[%d:%d], v7, s[4:7], s17 offen sc1", OUTP + 8, OUTP + 9); vm.issue()
    e("v_pk_add_f32 v[%d:%d], v[%d:%d], v[%d:%d]", T1, T2, FS, FS + 1, FS + 2, FS + 3)
    e("v_pk_mul_f32 v[%d:%d], v[%d:%d], v[%d:%d]", S1, S2, FS, FS + 1, FS, FS + 1)
    e("v_pk_fma_f32 v[%d:%d], v[%d:%d], v[%d:%d], v[%d:%d]", S1, S2, FS + 2, FS + 3, FS + 2, FS + 3, S1, S2)
    for i in range(4, 20, 2):
        e("v_pk_add_f32 v[%d:%d], v[%d:%d], v[%d:%d]", T1, T2, T1, T2, FS + i, FS + i + 1)
        e("v_pk_fma_f32 v[%d:%d], v[%d:%d], v[%d:%d], v[%d:%d]", S1, S2, FS + i, FS + i + 1, FS + i, FS + i + 1, S1, S2)
    e("v_add_f32 v%d, v%d, v%d", S2, S1, S2)
    e("v_add_f32 v%d, v%d, v%d", S1, T1, T2)
    e("v_permlane16_swap_b32 v%d, v%d", S1, S2)
    e("v_add_f32 v%d, v%d, v%d", S1, S1, S2)
    e("v_mov_b32 v%d, v%d", S2, S1)
    e("v_permlane32_swap_b32 v%d, v%d", S1, S2)
    e("v_add_f32 v%d, v%d, v%d", S1, S1, S2)
    e("v_mov_b32 v%d, v%d", S2, S1)
    e("v_permlane16_swap_b32 v%d, v%d", S1, S2)
    e("s_lshl_b32 s17, s%d, 10", STTW); e("s_lshl_b32 s18, s%d, 7", SCB); e("s_add_u32 s17, s17, s18"); e("s_add_u32 s17, s17, s%d", stout)
    e("s_mov_b64 exec, 0xffff")
    e("buffer_store_dwordx2 v[%d:%d], v7, s[4:7], s17 offen sc1", S1, S2); last = vm.issue()
    e("s_mov_b64 exec, -1")
    return last
```

```python
from common import *

NA, NB, NC, ND, NE, NF = 96, 64, 144, 48, 128, 8
OA = 0; OB_ = OA + NA; OC = OB_ + NB; OD = OC + NC; OE = OD + ND; OF = OE + NE
PREP_TASKS = OF + NF

def gen_prep(a, name="prep_kernel"):
    kernel_begin(a, name)
    PSC = os.environ.get("PSC", "BCDEF")
    cur = {"t": "-"}
    def e(fmt, *args):
        if fmt.startswith("buffer_store") and "s66" not in fmt and cur["t"] in PSC: fmt += " sc1"
        a.e(fmt, *args)
    e("s_cmp_ge_u32 s2, %d", PREP_TASKS); e("s_cbranch_scc1 %s_end", name)
    if int(os.environ.get("PPF", "1")):
        lab = a.newlabel("pc")
        e("s_getpc_b64 s[70:71]")
        a.label(lab)
        e("s_lshr_b32 s72, s2, 3"); e("s_lshl_b32 s72, s72, 11")
        e("v_lshlrev_b32 v240, 4, v0"); e("v_add_u32 v240, s72, v240")
        e("v_min_u32 v241, main_kernel_end-%s-16, v240" % lab)
        e("global_load_dwordx4 v[244:247], v241, s[70:71]")
        e("v_add_u32 v240, 1024, v240"); e("v_min_u32 v241, main_kernel_end-%s-16, v240" % lab)
        e("global_load_dwordx4 v[244:247], v241, s[70:71]")
    e("s_load_dwordx4 s[8:11], s[0:1], 0")
    e("s_load_dwordx4 s[12:15], s[0:1], 16")
    e("s_load_dwordx2 s[16:17], s[0:1], 40")
    e("s_load_dwordx2 s[20:21], s[0:1], 56")
    e("s_load_dwordx2 s[22:23], s[0:1], 88")
    PD = bool(os.environ.get("PDIAG"))
    if PD: e("s_memrealtime s[60:61]")
    def pst(i):
        if PD or os.environ.get("DBGT"):
            e("s_memrealtime s[%d:%d]", 60 + 2 * i, 61 + 2 * i)
    def pfirst(n):
        if PD:
            e("s_waitcnt vmcnt(%d)", n - 1); e("s_memrealtime s[68:69]")
    DBGT = bool(os.environ.get("DBGT"))
    def pend():
        if PD:
            e("s_waitcnt vmcnt(0)")
            e("s_memrealtime s[64:65]"); e("s_waitcnt lgkmcnt(0)")
            e("s_lshl_b32 s66, s2, 4"); e("s_add_u32 s66, s66, 0x%x", STAMP + 0x100000)
            e("s_mov_b64 exec, 1"); e("v_mov_b32 v1, 0")
            for j, r in enumerate((60, 62, 64, 68)):
                e("v_mov_b32 v2, s%d", r); e("buffer_store_dword v2, v1, s[4:7], s66 offen offset:%d", 4 * j)
        e("s_endpgm")
    VLO, VQD, VL16 = 1, 2, 3
    e("v_and_b32 v%d, 15, v0", VLO)
    e("v_lshrrev_b32 v%d, 4, v0", VQD)
    e("v_lshlrev_b32 v%d, 4, v0", VL16)
    ONES = 4
    for i in range(4): e("v_mov_b32 v%d, 0x3f803f80", ONES + i)
    SEL0, SEL1 = 8, 12
    build_selectors(a, VLO, VQD, SEL0, SEL1, 16, 17)
    e("s_waitcnt lgkmcnt(0)")
    make_srd(a, 4, 22, WS_REC)
    SRC = 24
    e("s_and_b32 s46, s2, 7"); e("s_lshr_b32 s47, s2, 3")
    if int(os.environ.get("PTOUCH", "0")):
        TI, TA_, TB_, TC_ = 232, 233, 234, 235
        TD = 236
        e("s_lshl_b32 s48, s47, 6"); e("v_add_u32 v%d, s48, v0", TI)
        def div(dst, src, d):
            mul = {3: 21846, 5: 13108}[d]
            e("v_mul_u32_u24 v%d, %d, v%d", dst, mul, src); e("v_lshrrev_b32 v%d, 16, v%d", dst, dst)
        make_srd(a, 52, 10, D * 3 * D * 2)
        e("s_mul_i32 s48, s46, 160"); e("s_and_b32 s48, s48, 0xffffff80")
        for rep in range(2):
            e("v_add_u32 v%d, %d, v%d", TA_, 3904 * rep, TI)
            div(TB_, TA_, 3)
            e("v_mul_u32_u24 v%d, 3, v%d", TC_, TB_); e("v_sub_u32 v%d, v%d, v%d", TA_, TA_, TC_)
            e("v_lshlrev_b32 v%d, 7, v%d", TA_, TA_)
            e("v_mul_u32_u24 v%d, 1280, v%d", TB_, TB_)
            e("v_add_u32 v%d, v%d, v%d", TA_, TA_, TB_)
            e("buffer_load_dword v%d, v%d, s[52:55], s48 offen", TD + rep, TA_)
        make_srd(a, 56, 16, D * F * 2)
        e("s_lshr_b32 s48, s46, 2"); e("s_mul_i32 s48, s48, 54"); e("s_and_b32 s49, s46, 3"); e("s_mul_i32 s49, s49, 14"); e("s_add_u32 s48, s48, s49")
        e("s_lshl_b32 s48, s48, 5"); e("s_and_b32 s48, s48, 0xffffff80")
        div(TB_, TI, 5)
        e("v_mul_u32_u24 v%d, 5, v%d", TC_, TB_); e("v_sub_u32 v%d, v%d, v%d", TA_, TI, TC_)
        e("v_lshlrev_b32 v%d, 7, v%d", TA_, TA_); e("v_mul_u32_u24 v%d, 3456, v%d", TB_, TB_); e("v_add_u32 v%d, v%d, v%d", TA_, TA_, TB_)
        e("buffer_load_dword v%d, v%d, s[56:59], s48 offen", TD + 2, TA_)
        e("s_cmp_ge_u32 s47, %d", int(os.environ.get("PTW", "20"))); e("s_cbranch_scc1 %s_nw", name)
        e("s_waitcnt vmcnt(0)")
        a.label(name + "_nw")
    e("s_cmp_lt_u32 s47, 12"); e("s_cbranch_scc1 %s_A", name)
    e("s_cmp_lt_u32 s47, 20"); e("s_cbranch_scc1 %s_B", name)
    e("s_cmp_lt_u32 s47, 38"); e("s_cbranch_scc1 %s_C", name)
    e("s_cmp_lt_u32 s47, 44"); e("s_cbranch_scc1 %s_D", name)
    e("s_cmp_lt_u32 s47, 60"); e("s_cbranch_scc1 %s_E", name)
    e("s_branch %s_F", name)

    LD = 32
    CC = 192
    FR = 208
    NM = 216
    BF0, BF1 = 224, 228
    TMP = 232
    VA, VD0, VD1 = 20, 21, 22
    T0, T1, T2, T3 = 25, 26, 27, 28

    def mf(c, x, b, srcc):
        e("v_mfma_f32_16x16x32_bf16 v[%d:%d], v[%d:%d], v[%d:%d], %s", c, c + 3, x, x + 3, b, b + 3, srcc)

    def colmean(n, B0, B1):
        for i in range(n):
            lo, hi = LD + 8 * i, LD + 8 * i + 4
            z = "0" if i == 0 else None
            mf(CC, lo, B0, z or "v[%d:%d]" % (CC, CC + 3))
            mf(CC + 4, hi, B0, z or "v[%d:%d]" % (CC + 4, CC + 7))
            mf(CC + 8, lo, B1, z or "v[%d:%d]" % (CC + 8, CC + 11))
            mf(CC + 12, hi, B1, z or "v[%d:%d]" % (CC + 12, CC + 15))
        for f in range(2):
            c = CC + 8 * f
            for i in range(1, 8): e("v_add_f32 v%d, v%d, v%d", c, c, c + i)
            e("v_mov_b32 v%d, v%d", T2, c)
            e("v_permlane32_swap_b32 v%d, v%d", c, T2)
            e("v_add_f32 v%d, v%d, v%d", c, c, T2)
            e("v_mov_b32 v%d, v%d", T2, c)
            e("v_permlane16_swap_b32 v%d, v%d", c, T2)
            e("v_add_f32 v%d, v%d, v%d", c, c, T2)
            e("v_mul_f32 v%d, 0x%x, v%d", NM + 4 * f, f32bits(-1.0 / 640), c)
            for i in range(1, 4): e("v_mov_b32 v%d, v%d", NM + 4 * f + i, NM + 4 * f)

    def unit_body(i, nunits, B0, B1, dst0, dst1, vd0, vd1, center, wait):
        nst = 2 * i
        if wait: e("s_waitcnt vmcnt(%d)", min(2 * (nunits - 1 - i) + nst, 63))
        lo, hi = LD + 8 * i, LD + 8 * i + 4
        c0 = "v[%d:%d]" % (NM, NM + 3) if center else "0"
        c1 = "v[%d:%d]" % (NM + 4, NM + 7) if center else "0"
        mf(CC, lo, B0, c0); mf(CC + 4, hi, B0, c0); mf(CC + 8, lo, B1, c1); mf(CC + 12, hi, B1, c1)
        for f in range(2):
            for q in range(4):
                e("v_cvt_pk_bf16_f32 v%d, v%d, v%d", FR + 4 * f + q, CC + 8 * f + 2 * q, CC + 8 * f + 2 * q + 1)
        e("buffer_store_dwordx4 v[%d:%d], v%d, s[4:7], s%d offen", FR, FR + 3, vd0, dst0)
        e("buffer_store_dwordx4 v[%d:%d], v%d, s[4:7], s%d offen", FR + 4, FR + 7, vd1, dst1)

    a.label(name + "_A"); cur["t"] = "A"
    e("s_lshr_b32 s32, s47, 2")
    e("s_and_b32 s33, s47, 3"); e("s_lshl_b32 s34, s46, 2"); e("s_add_u32 s33, s33, s34")
    make_srd(a, SRC, 10, D * 3 * D * 2)
    e("v_mul_u32_u24 v%d, 3840, v%d", VA, VLO)
    e("v_lshl_add_u32 v%d, v%d, 4, v%d", VA, VQD, VA)
    e("s_mul_i32 s34, s32, 1280")
    e("s_mul_i32 s35, s33, 40"); e("s_add_u32 s34, s34, s35")
    for i in range(20):
        e("s_add_u32 s36, s34, %d", xt(i)[0] * 16 * 3840)
        e("buffer_load_dwordx4 v[%d:%d], v%d, s[%d:%d], s36 offen", LD + 8 * i, LD + 8 * i + 3, VA, SRC, SRC + 3)
        e("s_add_u32 s36, s34, %d", xt(i)[1] * 16 * 3840)
        e("buffer_load_dwordx4 v[%d:%d], v%d, s[%d:%d], s36 offen", LD + 8 * i + 4, LD + 8 * i + 7, VA, SRC, SRC + 3)
    pfirst(40)
    e("s_cmp_eq_u32 s32, 2"); e("s_cbranch_scc1 %s_Av", name)
    PH = 40
    make_srd(a, PH, 12, H * DH * DH * 2)
    e("s_mul_i32 s37, s33, 800")
    e("v_mov_b32 v%d, 0x%x", T3, OOB)
    for ft in range(2):
        for cls in range(2):
            e("v_mul_u32_u24 v%d, 320, v%d", T0, VQD)
            e("v_lshl_add_u32 v%d, v%d, 1, v%d", T0, VLO, T0)
            if ft: e("v_add_u32 v%d, 32, v%d", T0, T0)
            e("v_cmp_gt_u32 vcc, %d, v%d", 3 if cls == 0 else 2, VQD)
            e("v_cndmask_b32 v%d, v%d, v%d, vcc", T0, T3, T0)
            if ft:
                e("v_cmp_gt_u32 vcc, 4, v%d", VLO)
                e("v_cndmask_b32 v%d, v%d, v%d, vcc", T0, T3, T0)
            for ee in range(4):
                el = cls * 4 + ee
                e("buffer_load_ushort v%d, v%d, s[%d:%d], s37 offen offset:%d", TMP + ft * 8 + el, T0, PH, PH + 3, el * 40)
    e("s_waitcnt vmcnt(0)")
    for ft, BF in enumerate((BF0, BF1)):
        for dw in range(4):
            e("v_lshl_or_b32 v%d, v%d, 16, v%d", BF + dw, TMP + ft * 8 + 2 * dw + 1, TMP + ft * 8 + 2 * dw)
    e("s_branch %s_A2", name)
    a.label(name + "_Av")
    e("s_waitcnt vmcnt(0)")
    for dw in range(4):
        e("v_mov_b32 v%d, v%d", BF0 + dw, SEL0 + dw)
        e("v_mov_b32 v%d, v%d", BF1 + dw, SEL1 + dw)
    a.label(name + "_A2")
    a.fence()
    e("s_and_b32 s39, s33, 1"); e("s_lshl_b32 s38, s39, 1")
    e("s_cmp_eq_u32 s32, 2"); e("s_cselect_b32 s37, 10, 0")
    OOBR = 29
    e("v_mov_b32 v%d, 0x%x", OOBR, OOB)
    for ft, vd in ((0, VD0), (1, VD1)):
        e("v_add_u32 v%d, %d, v%d", T1, 16 * ft, VLO)
        e("v_cmp_le_u32 vcc, 10, v%d", T1)
        e("v_cndmask_b32 v%d, 0, 1, vcc", T0)
        e("v_mul_u32_u24 v%d, 10, v%d", T2, T0)
        e("v_sub_u32 v%d, v%d, v%d", T2, T1, T2)
        e("v_add_u32 v%d, s37, v%d", T2, T2)
        e("v_add_u32 v%d, s38, v%d", T0, T0)
        e("v_lshrrev_b32 v%d, 2, v%d", vd, T2)
        e("v_lshlrev_b32 v%d, 10, v%d", vd, vd)
        e("v_and_b32 v%d, 3, v%d", 30, T2)
        e("v_lshl_add_u32 v%d, v%d, 2, v%d", 30, T0, 30)
        e("v_lshl_add_u32 v%d, v%d, 4, v%d", 30, VQD, 30)
        e("v_lshl_add_u32 v%d, v%d, 4, v%d", vd, 30, vd)
        if ft:
            e("v_cmp_gt_u32 vcc, 4, v%d", VLO)
            e("v_cndmask_b32 v%d, v%d, v%d, vcc", vd, OOBR, vd)
    pst(1)
    colmean(20, BF0, BF1)
    e("s_lshr_b32 s38, s33, 1")
    e("s_mul_i32 s39, s38, %d", WQ_J); e("s_add_u32 s39, s39, 0x%x", WQ)
    e("s_cmp_eq_u32 s32, 0"); e("s_cselect_b32 s36, %d, 0", WQ_B); e("s_movk_i32 s37, 5120"); e("s_cselect_b32 s37, 3072, s37")
    e("s_add_u32 s36, s36, s39")
    for i in range(20):
        unit_body(i, 20, BF0, BF1, 36, 36, VD0, VD1, True, False)
        e("s_add_u32 s36, s36, s37")
    pend()

    a.label(name + "_B"); cur["t"] = "B"
    e("s_sub_u32 s30, s47, 12")
    e("s_lshr_b32 s31, s30, 2"); e("s_lshl_b32 s34, s46, 1"); e("s_add_u32 s31, s31, s34")
    e("s_and_b32 s32, s30, 3")
    e("s_and_b32 s34, s31, 7"); e("s_mul_i32 s35, s34, 7")
    e("s_cmp_eq_u32 s34, 7"); e("s_cselect_b32 s35, 48, s35")
    e("s_lshr_b32 s34, s31, 3"); e("s_mul_i32 s34, s34, 54"); e("s_add_u32 s35, s35, s34")
    e("s_lshl_b32 s34, s32, 1"); e("s_add_u32 s35, s35, s34")
    make_srd(a, SRC, 16, D * F * 2)
    e("v_mul_u32_u24 v%d, 3456, v%d", VA, VLO)
    e("v_lshl_add_u32 v%d, v%d, 4, v%d", VA, VQD, VA)
    e("s_lshl_b32 s36, s35, 5")
    for i in range(20):
        e("s_add_u32 s37, s36, %d", xt(i)[0] * 16 * 3456)
        e("buffer_load_dwordx4 v[%d:%d], v%d, s[%d:%d], s37 offen", LD + 8 * i, LD + 8 * i + 3, VA, SRC, SRC + 3)
        e("s_add_u32 s37, s36, %d", xt(i)[1] * 16 * 3456)
        e("buffer_load_dwordx4 v[%d:%d], v%d, s[%d:%d], s37 offen", LD + 8 * i + 4, LD + 8 * i + 7, VA, SRC, SRC + 3)
    pfirst(40)
    e("v_mov_b32 v%d, v%d", VD0, VL16)
    e("s_cmp_eq_u32 s32, 3"); e("s_cselect_b32 s38, 0x%x, 0", OOB)
    e("v_add_u32 v%d, s38, v%d", VD1, VL16)
    e("s_waitcnt vmcnt(0)")
    pst(1)
    colmean(20, SEL0, SEL1)
    e("s_mul_i32 s39, s31, 143360")
    e("s_lshl_b32 s40, s32, 11"); e("s_add_u32 s39, s39, s40"); e("s_add_u32 s39, s39, 0x%x", W1)
    for i in range(20):
        e("s_add_u32 s40, s39, %d", i * 7 * 1024)
        e("s_add_u32 s41, s39, %d", i * 7 * 1024 + 1024)
        unit_body(i, 20, SEL0, SEL1, 40, 41, VD0, VD1, True, False)
    pend()

    a.label(name + "_C"); cur["t"] = "C"
    e("s_sub_u32 s30, s47, 20")
    e("s_mul_i32 s31, s30, 43"); e("s_lshr_b32 s31, s31, 7")
    e("s_mul_i32 s32, s31, 3"); e("s_sub_u32 s32, s30, s32")
    e("s_and_b32 s34, s31, 1"); e("s_and_b32 s35, s46, 6"); e("s_add_u32 s34, s34, s35")
    e("s_lshr_b32 s33, s31, 1"); e("s_and_b32 s35, s46, 1"); e("s_mul_i32 s35, s35, 3"); e("s_add_u32 s33, s33, s35")
    make_srd(a, SRC, 20, F * D * 2)
    e("v_mul_u32_u24 v%d, 1280, v%d", VA, VLO)
    e("v_lshl_add_u32 v%d, v%d, 4, v%d", VA, VQD, VA)
    e("s_mul_i32 s36, s34, 160")
    e("s_lshl_b32 s37, s32, 6"); e("s_add_u32 s36, s36, s37")
    for i in range(9):
        e("s_mul_i32 s40, s33, 9"); e("s_add_u32 s40, s40, %d", i)
        e("s_mul_i32 s41, s40, 43"); e("s_lshr_b32 s41, s41, 7")
        e("s_mul_i32 s42, s41, 3"); e("s_sub_u32 s42, s40, s42")
        e("s_and_b32 s43, s41, 7"); e("s_mul_i32 s43, s43, 7"); e("s_min_u32 s43, s43, 48")
        e("s_lshr_b32 s44, s41, 3"); e("s_mul_i32 s44, s44, 54"); e("s_add_u32 s43, s43, s44")
        e("s_lshl_b32 s44, s42, 1"); e("s_add_u32 s43, s43, s44")
        e("s_sub_u32 s44, s41, 16"); e("s_mul_i32 s44, s44, 54"); e("s_mul_i32 s45, s42, 14"); e("s_add_u32 s44, s44, s45"); e("s_add_u32 s44, s44, 6")
        e("s_cmp_ge_u32 s40, 48"); e("s_cselect_b32 s43, s44, s43"); e("s_cselect_b32 s44, 7, 1")
        e("s_add_u32 s44, s44, s43")
        e("s_mul_i32 s37, s43, %d", 16 * 1280); e("s_add_u32 s37, s37, s36")
        e("buffer_load_dwordx4 v[%d:%d], v%d, s[%d:%d], s37 offen", LD + 8 * i, LD + 8 * i + 3, VA, SRC, SRC + 3)
        e("s_mul_i32 s37, s44, %d", 16 * 1280); e("s_add_u32 s37, s37, s36")
        e("buffer_load_dwordx4 v[%d:%d], v%d, s[%d:%d], s37 offen", LD + 8 * i + 4, LD + 8 * i + 7, VA, SRC, SRC + 3)
    e("v_mov_b32 v%d, v%d", VD0, VL16)
    e("s_cmp_eq_u32 s32, 2"); e("s_cselect_b32 s38, 0x%x, 0", OOB)
    e("v_add_u32 v%d, s38, v%d", VD1, VL16)
    e("s_mul_i32 s39, s34, 286720"); e("s_mul_i32 s40, s33, %d", 45 * 1024); e("s_add_u32 s39, s39, s40")
    e("s_lshl_b32 s40, s32, 11"); e("s_add_u32 s39, s39, s40"); e("s_add_u32 s39, s39, 0x%x", W2)
    for i in range(9):
        e("s_add_u32 s40, s39, %d", i * 5 * 1024)
        e("s_add_u32 s41, s39, %d", i * 5 * 1024 + 1024)
        unit_body(i, 9, SEL0, SEL1, 40, 41, VD0, VD1, False, True)
    pend()

    a.label(name + "_D"); cur["t"] = "D"
    e("s_sub_u32 s30, s47, 38")
    e("s_mul_i32 s31, s30, 43"); e("s_lshr_b32 s31, s31, 7")
    e("s_mul_i32 s32, s31, 3"); e("s_sub_u32 s32, s30, s32")
    e("s_and_b32 s34, s46, 6"); e("s_add_u32 s34, s34, s31")
    e("s_and_b32 s33, s46, 1")
    make_srd(a, SRC, 14, D * D * 2)
    e("s_mul_i32 s37, s34, 160")
    e("s_lshl_b32 s36, s32, 6"); e("s_add_u32 s36, s36, s37")
    e("v_and_b32 v%d, 3, v%d", T0, VLO)
    e("v_lshrrev_b32 v%d, 2, v%d", T1, VLO)
    e("v_mul_u32_u24 v%d, 10, v%d", T1, T1)
    e("v_add_u32 v%d, v%d, v%d", T2, T1, T0)
    e("v_and_b32 v%d, 1, v%d", T3, T0)
    e("v_add3_u32 v%d, v%d, v%d, 8", T3, T3, T1)
    e("v_lshrrev_b32 v%d, 1, v%d", 30, T0)
    e("v_mul_u32_u24 v%d, 40, v%d", 30, 30)
    e("v_add_u32 v%d, v%d, v%d", T3, T3, 30)
    for T in (T2, T3):
        e("v_mul_u32_u24 v%d, 1280, v%d", T, T)
        e("v_lshl_add_u32 v%d, v%d, 4, v%d", T, VQD, T)
    e("s_cmp_eq_u32 s33, 1"); e("s_cbranch_scc1 %s_D1", name)
    for g in range(2):
        if g == 1:
            a.label(name + "_D1"); a.fence()
        for i in range(10):
            kap = 10 * g + i
            for half in range(2):
                if kap < 16: row, v = 40 * kap + 4 * half, T2
                else: row, v = 160 * (kap - 16) + 80 * half, T3
                e("s_add_u32 s37, s36, %d", row * 1280)
                e("buffer_load_dwordx4 v[%d:%d], v%d, s[%d:%d], s37 offen", LD + 8 * i + 4 * half, LD + 8 * i + 4 * half + 3, v, SRC, SRC + 3)
        if g == 0: e("s_branch %s_D2", name)
    a.label(name + "_D2"); a.fence()
    e("v_mov_b32 v%d, v%d", VD0, VL16)
    e("s_cmp_eq_u32 s32, 2"); e("s_cselect_b32 s38, 0x%x, 0", OOB)
    e("v_add_u32 v%d, s38, v%d", VD1, VL16)
    e("s_mul_i32 s39, s34, %d", 100 * 1024); e("s_mul_i32 s40, s33, %d", 50 * 1024); e("s_add_u32 s39, s39, s40")
    e("s_lshl_b32 s40, s32, 11"); e("s_add_u32 s39, s39, s40"); e("s_add_u32 s39, s39, 0x%x", WO)
    for i in range(10):
        e("s_add_u32 s40, s39, %d", i * 5 * 1024)
        e("s_add_u32 s41, s39, %d", i * 5 * 1024 + 1024)
        unit_body(i, 10, SEL0, SEL1, 40, 41, VD0, VD1, False, True)
    pend()

    a.label(name + "_E"); cur["t"] = "E"
    e("s_sub_u32 s30, s47, 44"); e("s_lshl_b32 s31, s46, 4"); e("s_add_u32 s30, s30, s31")
    make_srd(a, SRC, 8, S * D * 2)
    e("v_mul_u32_u24 v%d, 1280, v%d", VA, VLO)
    e("v_lshl_add_u32 v%d, v%d, 3, v%d", VA, VQD, VA)
    e("s_mul_i32 s36, s30, %d", 16 * 1280)
    XR = 32
    for k in range(20):
        e("buffer_load_dwordx2 v[%d:%d], v%d, s[%d:%d], s36 offen offset:%d", XR + 4 * k, XR + 4 * k + 1, VA, SRC, SRC + 3, xt(k)[0] * 32)
        e("buffer_load_dwordx2 v[%d:%d], v%d, s[%d:%d], s36 offen offset:%d", XR + 4 * k + 2, XR + 4 * k + 3, VA, SRC, SRC + 3, xt(k)[1] * 32)
    pfirst(40)
    e("v_mov_b32 v%d, 0", T0); e("v_mov_b32 v%d, 0", T1)
    e("s_mul_i32 s37, s30, 20480"); e("s_add_u32 s37, s37, 0x%x", XF[0])
    for k in range(20):
        e("s_waitcnt vmcnt(%d)", min(2 * (19 - k) + k, 63))
        if k and k % 4 == 0: e("s_add_u32 s37, s37, 4096")
        if k < 16:
            e("buffer_store_dwordx4 v[%d:%d], v%d, s[4:7], s37 offen offset:%d", XR + 4 * k, XR + 4 * k + 3, VL16, (k % 4) * 1024)
        else:
            e("v_lshlrev_b32 v%d, 3, v0", T2)
            e("buffer_store_dwordx2 v[%d:%d], v%d, s[4:7], s37 offen offset:%d", XR + 4 * k, XR + 4 * k + 1, T2, (k % 4) * 1024)
            e("buffer_store_dwordx2 v[%d:%d], v%d, s[4:7], s37 offen offset:%d", XR + 4 * k + 2, XR + 4 * k + 3, T2, (k % 4) * 1024 + 512)
        for q in range(4):
            e("v_dot2_f32_bf16 v%d, v%d, v%d, v%d", T0, XR + 4 * k + q, ONES, T0)
            e("v_dot2_f32_bf16 v%d, v%d, v%d, v%d", T1, XR + 4 * k + q, XR + 4 * k + q, T1)
    for T in (T0, T1):
        e("v_mov_b32 v%d, v%d", T2, T)
        e("v_permlane32_swap_b32 v%d, v%d", T, T2)
        e("v_add_f32 v%d, v%d, v%d", T, T, T2)
        e("v_mov_b32 v%d, v%d", T2, T)
        e("v_permlane16_swap_b32 v%d, v%d", T, T2)
        e("v_add_f32 v%d, v%d, v%d", T, T, T2)
    SV = 112
    e("v_cmp_eq_u32 vcc, 0, v%d", VQD)
    e("v_cndmask_b32 v%d, 0, v%d, vcc", SV, T0)
    e("v_cndmask_b32 v%d, 0, v%d, vcc", SV + 1, T1)
    e("v_mov_b32 v%d, 0", SV + 2); e("v_mov_b32 v%d, 0", SV + 3)
    e("v_lshlrev_b32 v%d, 3, v%d", T2, VLO)
    e("v_lshl_add_u32 v%d, v%d, 8, v%d", T2, VQD, T2)
    e("s_lshl_b32 s37, s30, 10"); e("s_add_u32 s37, s37, 0x%x", ST[0])
    e("buffer_store_dwordx2 v[%d:%d], v%d, s[4:7], s37 offen", SV, SV + 1, T2)
    e("buffer_store_dwordx2 v[%d:%d], v%d, s[4:7], s37 offen offset:128", SV + 2, SV + 3, T2)
    pend()

    a.label(name + "_F"); cur["t"] = "F"
    e("s_mov_b32 s30, s46")
    for i in range(4): e("v_mov_b32 v%d, 0", 32 + i)
    e("s_mul_i32 s36, s30, 49152"); e("s_add_u32 s36, s36, 0x%x", KV[0])
    for i in range(48):
        if i and i % 4 == 0: e("s_add_u32 s36, s36, 4096")
        e("buffer_store_dwordx4 v[32:35], v%d, s[4:7], s36 offen offset:%d", VL16, (i % 4) * 1024)
    e("s_mul_i32 s36, s30, 286720"); e("s_add_u32 s36, s36, 0x%x", W2 + 54 * 5120)
    for i in range(10):
        if i and i % 4 == 0: e("s_add_u32 s36, s36, 4096")
        e("buffer_store_dwordx4 v[32:35], v%d, s[4:7], s36 offen offset:%d", VL16, (i % 4) * 1024)
    e("s_mul_i32 s36, s30, 3072"); e("s_add_u32 s36, s36, 0x%x", CNT)
    for i in range(3):
        e("buffer_store_dwordx4 v[32:35], v%d, s[4:7], s36 offen offset:%d", VL16, i * 1024)
    pend()
    a.label(name + "_end")
    e("s_endpgm")
    return dict(name=name, grid=PREP_TASKS, block=64, lds=0, vgpr=248, accum=None)
```
